```python
import torch

def _softmax(x, axis=-1):
    return torch.softmax(x, dim=axis)
def _gelu(x):
    return torch.nn.functional.gelu(x, approximate="tanh")
def _silu(x):
    return torch.nn.functional.silu(x)
def _sigmoid(x):
    return torch.sigmoid(x)
def _layernorm(x, axis=-1, eps=1e-5):
    m = x.mean(dim=axis, keepdim=True)
    v = x.var(dim=axis, keepdim=True, unbiased=False)
    return (x - m) / torch.sqrt(v + eps)
def _scatter_add(tgt, idx, src, axis=0):
    return tgt.clone().index_add_(axis, idx, src)
def _segment_sum(src, seg, n):
    out = torch.zeros((n,) + src.shape[1:], dtype=src.dtype)
    return out.index_add_(0, seg, src)
def _pad(x, pw):
    flat = tuple(v for pair in reversed(pw) for v in pair)
    return torch.nn.functional.pad(x, flat)

kernel_name = 'interleave_layers__sliding_local_dilated__moe_arch_mod__prompt'

def setup_inputs():

    _w = (lambda a: (lambda t: t.to(torch.bfloat16) if t.is_floating_point() else t)(torch.as_tensor(a)))
    def _A_setup():
        B, S, D = 1, 2048, 512
        return {
            "x": _w((lambda *s: torch.randn(*s, dtype=torch.bfloat16) * 0.05)(B, S, D)),
            "wqkv": _w((lambda *s: torch.randn(*s, dtype=torch.bfloat16) * 0.05)(D, 3 * D)),
            "wo": _w((lambda *s: torch.randn(*s, dtype=torch.bfloat16) * 0.05)(D, D)),
        }
    _A_in = _A_setup()

    def _B_setup():
        B, S, D, F, C = 1, 2048, 512, 1792, 2
        return {
            "x": _w((lambda *s: torch.randn(*s, dtype=torch.bfloat16) * 0.05)(B, S, D)),
            "w_r": _w((lambda *s: torch.randn(*s, dtype=torch.bfloat16) * 0.05)(D)),
            "w_gate": _w((lambda *s: torch.randn(*s, dtype=torch.bfloat16) * 0.05)(D, F)),
            "w_up": _w((lambda *s: torch.randn(*s, dtype=torch.bfloat16) * 0.05)(D, F)),
            "w_down": _w((lambda *s: torch.randn(*s, dtype=torch.bfloat16) * 0.05)(F, D)),
        }
    _B_in = _B_setup()

    return {
        "A_x": _A_in["x"],
        "A_wqkv": _A_in["wqkv"],
        "A_wo": _A_in["wo"],
        "B_x": _B_in["x"],
        "B_w_r": _B_in["w_r"],
        "B_w_gate": _B_in["w_gate"],
        "B_w_up": _B_in["w_up"],
        "B_w_down": _B_in["w_down"],
    }

def reference(A_x, A_wqkv, A_wo, B_x, B_w_r, B_w_gate, B_w_up, B_w_down):
    def _A_ref(x, wqkv, wo):
        B, S, D = x.shape
        H = 32; Dh = D // H
        W, dil = 8, 2
        qkv = (lambda x, *d: x.permute(*d))((x @ wqkv).reshape(B, S, 3, H, Dh), 2, 0, 3, 1, 4)
        q, k, v = qkv[0], qkv[1], qkv[2]
        scale = Dh ** -0.5
        pos = torch.arange(S)
        off = torch.arange(W) * dil
        idx = pos[:, None] - off[None, :]
        mask = idx >= 0
        idx_c = torch.where(mask, idx, 0).reshape(-1)
        kg = k[:, :, idx_c, :].reshape(B, H, S, W, Dh)
        vg = v[:, :, idx_c, :].reshape(B, H, S, W, Dh)
        logits = torch.einsum("bhsd,bhswd->bhsw", q, kg) * scale
        logits = torch.where(mask[None, None, :, :], logits, -1e9)
        attn = _softmax(logits, axis=-1)
        o = torch.einsum("bhsw,bhswd->bhsd", attn, vg)
        return (lambda x, *d: x.permute(*d))(o, 0, 2, 1, 3).reshape(B, S, D) @ wo

    def _B_ref(x, w_r, w_gate, w_up, w_down):
        B, S, D = x.shape
        C = 2
        r = x @ w_r
        idx = torch.argsort(-r, axis=-1)[:, :C]
        idx_e = (lambda x, n, axis: torch.repeat_interleave(x, n, dim=axis))(idx.reshape(B, C, 1), D, axis=2)
        x_sel = (lambda x, i, axis: torch.take_along_dim(x, i, dim=axis))(x, idx_e, axis=1)
        g = _silu(x_sel @ w_gate)
        u = x_sel @ w_up
        y = (g * u) @ w_down
        r_sel = _sigmoid((lambda x, i, axis: torch.take_along_dim(x, i, dim=axis))(r, idx, axis=1))
        y = y * r_sel.reshape(B, C, 1)
        b_off = (torch.arange(B) * S).reshape(B, 1)
        flat_idx = (idx + b_off).reshape(B * C)
        zero = (x * 0.0).reshape(B * S, D)
        upd = _scatter_add(zero, flat_idx, y.reshape(B * C, D), axis=0)
        return x + upd.reshape(B, S, D)

    x = A_x
    x = x + _A_ref(_layernorm(x, axis=-1), A_wqkv, A_wo)
    x = x + _B_ref(_layernorm(x, axis=-1), B_w_r, B_w_gate, B_w_up, B_w_down)
    x = x + _A_ref(_layernorm(x, axis=-1), A_wqkv, A_wo)
    x = x + _B_ref(_layernorm(x, axis=-1), B_w_r, B_w_gate, B_w_up, B_w_down)
    return x
```

```python
import re

TRANS = ('v_exp_f32', 'v_log_f32', 'v_rcp_f32', 'v_rsq_f32', 'v_sqrt_f32', 'v_sin_f32', 'v_cos_f32',
         'v_rcp_iflag_f32')


def v(i, n=1):
    return f"v{i}" if n == 1 else f"v[{i}:{i + n - 1}]"


def a(i, n=1):
    return f"a{i}" if n == 1 else f"a[{i}:{i + n - 1}]"


def s(i, n=1):
    return f"s{i}" if n == 1 else f"s[{i}:{i + n - 1}]"


_REG = re.compile(r'^(-|abs\()?([vas])(\d+)\)?$')
_RNG = re.compile(r'^(-)?([vas])\[(\d+):(\d+)\]$')


def regs_of(op):
    op = op.strip()
    m = _REG.match(op)
    if m:
        return {(m.group(2), int(m.group(3)))}
    m = _RNG.match(op)
    if m:
        return {(m.group(2), i) for i in range(int(m.group(3)), int(m.group(4)) + 1)}
    if op in ('vcc', 'vcc_lo', 'vcc_hi'):
        return {('vcc', 0)}
    if op in ('exec', 'exec_lo', 'exec_hi'):
        return {('exec', 0)}
    if op == 'm0':
        return {('m0', 0)}
    return set()


class Ins:
    def __init__(self, text):
        self.text = text
        t = text.split(';')[0].strip()
        self.label = None
        self.op = None
        if t.endswith(':'):
            self.label = t[:-1]
            return
        if t.startswith('.') or not t:
            return
        parts = t.split(None, 1)
        self.op = parts[0]
        rest = parts[1] if len(parts) > 1 else ''
        ops, depth, cur = [], 0, ''
        for ch in rest:
            if ch in '[(':
                depth += 1
            if ch in '])':
                depth -= 1
            if ch == ',' and depth == 0:
                ops.append(cur.strip())
                cur = ''
            else:
                cur += ch
        if cur.strip():
            ops.append(cur.strip())
        self.mods = ''
        if ops:
            last = ops[-1].split(None, 1)
            ops[-1] = last[0]
            if len(last) > 1:
                self.mods = last[1]
        self.ops = ops
        self.classify()

    def classify(self):
        op = self.op
        o = self.ops
        R = lambda lst: set().union(*[regs_of(x) for x in lst]) if lst else set()
        self.is_mfma = op.startswith('v_mfma')
        self.is_valu = op.startswith('v_') and not self.is_mfma
        self.is_salu = op.startswith('s_')
        self.is_ds = op.startswith('ds_')
        self.is_vmem = op.startswith(('buffer_', 'global_', 'flat_'))
        self.is_trans = any(op.startswith(t) for t in TRANS)
        self.is_dpp = '_dpp' in op or 'row_' in self.mods or 'quad_perm' in self.mods
        self.is_permlane = op.startswith('v_permlane')
        self.is_dot = op.startswith('v_dot')
        self.is_lanes = op.startswith(('v_readlane', 'v_readfirstlane', 'v_writelane'))
        self.is_ldsdma = self.is_vmem and (' lds' in (' ' + self.mods) or '_lds_' in op)
        self.wr, self.rd = set(), set()
        self.srcA = self.srcB = self.srcC = set()
        self.store_data = set()
        if self.is_mfma:
            self.wr = R(o[0:1])
            self.srcA, self.srcB, self.srcC = R(o[1:2]), R(o[2:3]), R(o[3:4])
            self.rd = self.srcA | self.srcB | self.srcC
            self.passes = 8 if '32x32' in op else 4
        elif self.is_valu:
            if op.startswith('v_cmp'):
                self.wr = R(o[0:1])
                self.rd = R(o[1:])
                if op.startswith('v_cmpx'):
                    self.wr |= {('exec', 0)}
            elif self.is_permlane:
                self.wr = R(o[0:2])
                self.rd = R(o[0:2])
            elif op.startswith(('v_add_co', 'v_sub_co', 'v_addc_co', 'v_subb_co', 'v_subrev_co')):
                self.wr = R(o[0:2])
                self.rd = R(o[2:])
            elif op == 'v_nop':
                pass
            else:
                self.wr = R(o[0:1])
                self.rd = R(o[1:])
                if op.startswith(('v_fmac', 'v_dot2c', 'v_writelane', 'v_pk_fmac')) or self.is_dpp:
                    self.rd |= self.wr
                if op.startswith('v_cndmask') and len(o) == 3:
                    self.rd |= {('vcc', 0)}
        elif self.is_ds:
            if op.startswith(('ds_read', 'ds_bpermute', 'ds_permute', 'ds_swizzle')):
                self.wr = R(o[0:1])
                self.rd = R(o[1:])
            else:
                self.rd = R(o)
        elif self.is_vmem:
            if self.is_ldsdma:
                self.rd = R(o) | {('m0', 0)}
            elif '_load' in op:
                self.wr = R(o[0:1])
                self.rd = R(o[1:])
            elif op.startswith('buffer_store') or op.startswith('buffer_atomic'):
                self.rd = R(o)
                if 'x3' in op or 'x4' in op:
                    self.store_data = R(o[0:1])
            elif op.startswith('global_store'):
                self.rd = R(o)
                if 'x3' in op or 'x4' in op:
                    self.store_data = R(o[1:2])
            else:
                self.rd = R(o)
        elif self.is_salu:
            if op.startswith(('s_cmp', 's_bitcmp', 's_cbranch', 's_branch', 's_waitcnt', 's_barrier', 's_nop',
                              's_sleep', 's_setprio', 's_endpgm', 's_setpc')):
                self.rd = R(o)
            else:
                self.wr = R(o[0:1])
                self.rd = R(o[1:])
                if 'saveexec' in op:
                    self.wr |= {('exec', 0)}

    def states(self):
        if self.op is None:
            return 0
        if self.op == 's_nop':
            return int(self.ops[0], 0) + 1
        return 1


def vreg(x):
    return {r for r in x if r[0] in 'va'}


def sreg(x):
    return {r for r in x if r[0] in ('s', 'vcc')}


def required(p, c):
    need = 0
    pw = p.wr
    if p.is_valu:
        vw = vreg(pw)
        sw = sreg(pw)
        if c.is_mfma and vw & c.rd:
            need = max(need, 2)
        if c.is_permlane and vw & c.rd:
            need = max(need, 2)
        if c.is_valu and c.is_dpp and vw & c.rd:
            need = max(need, 2)
        if c.is_lanes and vw & c.rd and not c.op.startswith('v_writelane'):
            need = max(need, 1)
        if p.is_trans and c.is_valu and not c.is_trans and vw & c.rd:
            need = max(need, 1)
        if p.is_trans and (c.is_mfma) and vw & c.rd:
            need = max(need, 2)
        if sw:
            if c.is_valu and sw & c.rd:
                need = max(need, 4 if c.is_lanes else 2)
            if c.is_vmem and sw & c.rd:
                need = max(need, 5)
            if c.is_salu and sw & c.rd:
                need = max(need, 1)
        if ('exec', 0) in pw:
            if c.is_mfma or c.is_permlane or c.is_lanes:
                need = max(need, 4)
            if c.is_dpp:
                need = max(need, 5)
        if p.is_dot and c.is_valu and (vw & (c.rd | c.wr)):
            same = (p.op == c.op)
            if same and not (vw & set().union(*[regs_of(x) for x in c.ops[1:3]])):
                pass
            else:
                need = max(need, 3)
        if p.is_dot and (c.is_mfma or c.is_vmem or c.is_ds) and (vw & c.rd):
            need = max(need, 3)
        if ('op_sel' in p.mods and not p.op.startswith('v_pk')) or 'sdwa' in p.op:
            if c.is_valu and vw & (c.rd | c.wr):
                need = max(need, 1)
    if p.is_salu and ('m0', 0) in pw and c.is_ldsdma:
        need = max(need, 1)
    if p.is_salu and ('exec', 0) in pw and c.is_dpp:
        need = max(need, 1)
    if p.store_data:
        if c.is_valu and p.store_data & c.wr:
            need = max(need, 2)
        elif (c.is_mfma or c.is_ds or c.is_vmem) and p.store_data & c.wr:
            need = max(need, 1)
    if p.is_mfma:
        D = pw
        n = p.passes
        if c.is_mfma:
            if D & (c.srcA | c.srcB):
                need = max(need, {4: 8, 8: 12}[n])
            if D & c.srcC:
                if D == c.srcC and c.passes == n and p.op == c.op:
                    pass
                else:
                    need = max(need, {4: 6, 8: 10}[n])
            elif D & c.wr:
                need = max(need, {4: 6, 8: 10}[n])
        elif (c.is_valu or c.is_ds or c.is_vmem) and D & (c.rd | c.wr):
            need = max(need, {4: 8, 8: 12}[n])
        if c.is_valu and (p.srcC & c.wr):
            need = max(need, {4: 3, 8: 7}[n])
    return need


class Asm:
    def __init__(self):
        self.lines = []
        self.uid = 0

    def __call__(self, text):
        for ln in text.split('\n'):
            ln = ln.strip()
            if ln:
                self.lines.append(ln)

    def label(self, name):
        self.lines.append(name + ':')

    def newlabel(self, base='L'):
        self.uid += 1
        return f"{base}_{self.uid}"

    def comment(self, t):
        self.lines.append('; ' + t)

    def finish(self, window=24, verbose=False):
        self._lab = None
        return self._finish_fast([Ins(t) for t in self.lines], window, verbose)

    def _finish_fast(self, ins, window, verbose):
        while True:
            changed = False
            i = 0
            while i < len(ins):
                x = ins[i]
                if x.op and x.op != 's_nop':
                    lab = None
                    d = self._deficit(ins, i, x, window)
                    if d > 0:
                        if verbose:
                            print(f"nop {d} before: {x.text}")
                        ins.insert(i, Ins(f"s_nop {d - 1}"))
                        self._lab = None
                        changed = True
                        i += 1
                i += 1
            if not changed:
                break
        return '\n'.join(self.fmt(x) for x in ins) + '\n'

    _lab = None

    def _deficit(self, ins, i, c, window):
        if self._lab is None:
            lab = {x.label: k for k, x in enumerate(ins) if x.label}
            srcs = {}
            for k, x in enumerate(ins):
                if x.op and x.op.startswith(('s_cbranch', 's_branch')):
                    srcs.setdefault(lab[x.ops[0]], []).append(k)
            self._lab = srcs
        srcs = self._lab

        def walk(i, dist, seen):
            worst = 0
            j = i - 1
            while j >= 0 and dist < window:
                x = ins[j]
                if x.label:
                    for b in srcs.get(j, []):
                        if (b, dist) not in seen:
                            seen.add((b, dist))
                            worst = max(worst, walk(b, dist + 1, seen))
                elif x.op:
                    if x.op in ('s_branch', 's_endpgm', 's_setpc_b64'):
                        return worst
                    worst = max(worst, required(x, c) - dist)
                    dist += x.states()
                j -= 1
            return worst

        return walk(i, 0, set())

    @staticmethod
    def fmt(x):
        if x.label or x.text.startswith(';'):
            return x.text
        return '    ' + x.text
```

```python
EPOCH_OFF  = 0
XCC_BASE   = 0x18000
OFLG_BASE  = 0x2000
XFLG_BASE  = 0x4000
REC_BASE   = 0x8000
REC_LAYER  = 0x4000
FIX_BASE   = 0x10000
STAT_BASE  = 0x20000
STAT_LAYER = 0x40000
CAND_BASE  = 0xA0000
CAND_LAYER = 0x40000
NG = 56
PART_BASE  = 0x120000
PART_LAYER = 2*8*NG*256
STAMP_BASE = 0x1A0000
O_BASE     = 0x200000
X1_BASE    = 0x400000
WS_USED    = 0x600000
assert PART_BASE + 2*PART_LAYER <= STAMP_BASE
```

```python
import sys, argparse
from asmlib import Asm, v, a, s
from layout import *

NAME = 'interleave_layers__sliding_local_dilated__moe_arch_mod__prompt'

XIMG = 0
RING = 81920
WOB = RING + 12288
MISC = 159744
L_MEAN = MISC
L_RS = MISC + 320
L_FP = MISC + 640
L_PRIV = L_FP + 2048
LDS_BYTES = 163840
assert L_PRIV + 1024 <= LDS_BYTES


def phys(i):
    return ((i % 6 + 3) % 6) * 12288


sX0, sWQ, sWO, sWS, sOUT, sWG, sWU, sWD, sWR = 8, 12, 16, 20, 24, 28, 32, 36, 40
sWAVE, sM, sQ, sXX, sP, sB, sCID, sTAG, sROT, sFAST, sLAYER, sGIDX = range(44, 56)
sT0, sT1, sT2, sT3, sT4, sT5, sT6, sT7 = range(56, 64)
sDIAG, sM1, sM2, sM3 = 64, 66, 68, 70
sXOWN, sKX, sLX, sW3072, sKS = 72, 73, 74, 75, 76
sSPIN = 77
sSUMW = 78
sK1, sK2 = 79, 80
sEX = 82
sAFF = 84
sE0, sE1 = 86, 87
sC0, sC1, sC2, sC3 = 88, 89, 90, 91
sST = 92
sOB = 94
sPASS, sMASK = 95, 96
sD0, sD1, sHALO, sW1024 = 97, 98, 99, 100
sREC = 81
sLT2 = 6
sSLOT, sKK = 85, 101
sSTB = 5
GQ = 1
N256 = NG * 256
vL, vT, vG, vL16, vOX = 0, 1, 2, 3, 4
vXR = 5
vTRO = 9
vSQK, vSV = 13, 14
vCSQ, vCSK, vCSV = 16, 20, 24
vSW = 25
vMC = 26
vNAT = 28
vKEY = 29
vBC, vBP, vBF, vONE = 32, 36, 40, 44
vWRF = 48
vRES = 56
vX1P, vHP = 72, 80
vWD = 88
vQP, vKP, vVP, vCQ = 120, 128, 138, 148
vTR = 152
vSTAMP = 151 + 104

NEG = 0xf149f2ca
LOG2E_Q = 0.25 * 1.4426950408889634


def f2u(x):
    import struct
    return struct.unpack('<I', struct.pack('<f', x))[0]


class Gen:
    def __init__(self, opt):
        self.o = opt
        self.A = Asm()
        self.nstamp = 0

    def stamp(self):
        if not self.o.stamps:
            return
        A = self.A
        A(f"s_memtime {s(sST, 2)}")
        A("s_waitcnt lgkmcnt(0)")
        A(f"v_writelane_b32 {v(vSTAMP)}, {s(sST)}, {self.nstamp}")
        self.nstamp += 1

    def srd(self, base, nbytes):
        self.A(f"s_mov_b32 {s(base + 2)}, {nbytes}")
        self.A(f"s_mov_b32 {s(base + 3)}, 0x20000")

    def st(self, op, data, voff, soff, extra=''):
        A = self.A
        l1, l2 = A.newlabel('LS'), A.newlabel('LS')
        A(f"s_cmp_eq_u32 {s(sFAST)}, 0")
        A(f"s_cbranch_scc1 {l1}")
        return l1, l2

    def dual(self, lines):
        A = self.A
        l1, l2 = A.newlabel('LS'), A.newlabel('LS')
        A(f"s_cmp_eq_u32 {s(sFAST)}, 0")
        A(f"s_cbranch_scc1 {l1}")
        for ln in lines:
            A(ln)
        A(f"s_branch {l2}")
        A.label(l1)
        for ln in lines:
            A(ln + (' sc1' if ln.startswith('buffer_store') else ''))
        A.label(l2)

    def spin_start(self):
        self.A(f"s_mov_b32 {s(sSPIN)}, 0x40000")

    def spin_check(self, loop, code):
        A = self.A
        done = A.newlabel('LD')
        A(f"s_cbranch_vccz {done}")
        A(f"s_sub_u32 {s(sSPIN)}, {s(sSPIN)}, 1")
        A(f"s_cbranch_scc0 {loop}")
        A.label(done)

    def prologue(self):
        A = self.A
        A(f"s_cmp_ge_u32 s2, 256")
        A("s_cbranch_scc1 L_END")
        for reg, off in ((sX0, 0), (sWQ, 8), (sWS, 80), (sWO, 16), (sWR, 32), (sWG, 40), (sWU, 48), (sWD, 56), (sOUT, 64)):
            A(f"s_load_dwordx2 {s(reg, 2)}, s[0:1], {off}")
        if self.o.stamps:
            A(f"v_mov_b32 {v(vSTAMP)}, 0")
        A(f"v_lshrrev_b32 v5, 6, v0")
        A(f"v_and_b32 {v(vL)}, 63, v0")
        A(f"v_readfirstlane_b32 {s(sWAVE)}, v5")
        self.srd(sX0, 2097152)
        self.srd(sWQ, 512 * 3072)
        self.srd(sWS, WS_USED)
        self.srd(sWO, 512 * 1024)
        self.srd(sWR, 1024)
        self.srd(sWG, 512 * 3584)
        self.srd(sWU, 512 * 3584)
        self.srd(sWD, 1792 * 1024)
        self.srd(sOUT, 2097152)
        A(f"""
        s_and_b32 {s(sXX)}, s2, 7
        s_lshr_b32 {s(sT0)}, s2, 3
        s_lshr_b32 {s(sQ)}, {s(sT0)}, 3
        s_and_b32 {s(sM)}, {s(sT0)}, 7
        s_and_b32 {s(sP)}, {s(sXX)}, 1
        s_lshr_b32 {s(sT1)}, {s(sXX)}, 1
        s_lshl_b32 {s(sT1)}, {s(sT1)}, 2
        s_add_u32 {s(sB)}, {s(sT1)}, {s(sQ)}
        s_lshl_b32 {s(sT1)}, {s(sP)}, 4
        s_add_u32 {s(sCID)}, {s(sT1)}, {s(sB)}
        s_mul_i32 {s(sROT)}, {s(sXX)}, {self.o.rota}
        s_mul_i32 {s(sT1)}, {s(sQ)}, {self.o.rotb}
        s_add_u32 {s(sROT)}, {s(sROT)}, {s(sT1)}
        s_and_b32 {s(sROT)}, {s(sROT)}, 7
        s_mov_b32 {s(sLAYER)}, 0
        """)
        A(f"""
        v_and_b32 {v(vT)}, 15, {v(vL)}
        v_lshrrev_b32 {v(vG)}, 4, {v(vL)}
        v_lshlrev_b32 {v(vL16)}, 4, {v(vL)}
        v_lshrrev_b32 v5, 3, {v(vL)}
        v_and_b32 v6, 7, {v(vL)}
        v_and_b32 v7, 6, v5
        v_xor_b32 v7, v6, v7
        v_lshlrev_b32 v7, 4, v7
        v_lshl_add_u32 {v(vOX)}, v5, 11, v7
        """)
        A(f"""
        s_and_b32 {s(sT2)}, {s(sWAVE)}, 1
        s_lshl_b32 {s(sT2)}, {s(sT2)}, 2
        v_and_b32 v7, 2, v5
        v_or_b32 v7, {s(sT2)}, v7
        v_xor_b32 v7, v6, v7
        v_lshlrev_b32 v7, 4, v7
        s_lshl_b32 {s(sT3)}, {s(sM)}, 7
        v_add_u32 v7, {s(sT3)}, v7
        s_lshl_b32 {s(sT4)}, {s(sWAVE)}, 3
        v_add_u32 v5, {s(sT4)}, v5
        v_mul_u32_u24 v30, 3072, v5
        v_add_u32 v30, v30, v7
        v_lshl_add_u32 v31, v5, 10, v7
        """)
        if 's' in self.o.exp:
            A(f"v_lshlrev_b32 v7, 4, v6")
            A(f"v_lshrrev_b32 v8, 3, {v(vL)}")
            A(f"v_lshl_add_u32 {v(vOX)}, v8, 11, v7")
            A(f"v_add_u32 v7, {s(sT3)}, v7")
            A(f"v_mul_u32_u24 v30, 3072, v5")
            A(f"v_add_u32 v30, v30, v7")
            A(f"v_lshl_add_u32 v31, v5, 10, v7")
        A(f"""
        s_lshl_b32 {s(sT0)}, {s(sB)}, 7
        s_lshl_b32 {s(sT1)}, {s(sWAVE)}, 5
        s_add_u32 {s(sT1)}, {s(sT1)}, {s(sT0)}
        s_add_u32 {s(sT1)}, {s(sT1)}, {s(sP)}
        s_lshl_b32 {s(sXOWN)}, {s(sT1)}, 10
        s_add_u32 {s(sT1)}, {s(sWAVE)}, 1
        s_lshl_b32 {s(sLX)}, {s(sT1)}, 11
        s_mul_i32 {s(sW3072)}, {s(sWAVE)}, 3072
        s_sub_u32 {s(sT0)}, {s(sT0)}, 16
        s_max_i32 {s(sT0)}, {s(sT0)}, 0
        s_add_u32 {s(sT0)}, {s(sT0)}, {s(sP)}
        s_lshl_b32 {s(sHALO)}, {s(sT0)}, 10
        s_lshl_b32 {s(sKX)}, {s(sROT)}, 7
        s_lshl_b32 {s(sKS)}, {s(sROT)}, 1
        s_lshl_b32 {s(sW1024)}, {s(sWAVE)}, 10
        """)
        A("s_waitcnt lgkmcnt(0)")
        self.stamp()
        A(f"s_load_dwordx2 {s(sE0, 2)}, {s(sWS, 2)}, {EPOCH_OFF}")

    def dma_halo(self, srd, base_add, sc):
        out = []
        for j in range(2):
            L = [f"s_lshl_b32 {s(sD0)}, {s(sWAVE)}, 1",
                 f"s_add_u32 {s(sD0)}, {s(sD0)}, {j}",
                 f"s_mul_i32 {s(sD1)}, {s(sD0)}, 10240",
                 f"s_add_u32 m0, {s(sD1)}, {XIMG + 1024}",
                 f"s_add_u32 {s(sD0)}, {s(sD0)}, {s(sROT)}",
                 f"s_and_b32 {s(sD0)}, {s(sD0)}, 7",
                 f"s_lshl_b32 {s(sD0)}, {s(sD0)}, 7",
                 f"s_add_u32 {s(sD0)}, {s(sD0)}, {s(sHALO)}"]
            if base_add:
                L.append(f"s_add_u32 {s(sD0)}, {s(sD0)}, {base_add}")
            L.append(f"buffer_load_dwordx4 {v(vOX)}, {s(srd, 4)}, {s(sD0)} offen{sc} lds")
            out.append(('H', L))
        return out

    def dma_x(self, P, srd, sc):
        return [(f'X{P}', [f"s_add_u32 m0, {s(sLX)}, {XIMG + P * 10240}",
                           f"s_add_u32 {s(sD0)}, {s(sXOWN)}, {s(sKX)}",
                           f"buffer_load_dwordx4 {v(vOX)}, {s(srd, 4)}, {s(sD0)} offen{sc} lds",
                           f"s_add_u32 {s(sKX)}, {s(sKX)}, 128"]),
                (f'X{P}', [f"s_add_u32 m0, {s(sLX)}, {XIMG + P * 10240 + 1024}",
                           f"s_add_u32 {s(sD0)}, {s(sD0)}, 16384",
                           f"buffer_load_dwordx4 {v(vOX)}, {s(srd, 4)}, {s(sD0)} offen{sc} lds",
                           f"s_and_b32 {s(sKX)}, {s(sKX)}, 1023"])]

    def dma_w(self, i):
        return [(f'W{i}', [f"s_add_u32 m0, {s(sW3072)}, {RING + phys(i)}",
                           f"s_mul_i32 {s(sD0)}, {s(sKS)}, 98304",
                           f"buffer_load_dwordx4 v30, {s(sWQ, 4)}, {s(sD0)} offen lds",
                           f"s_add_u32 {s(sKS)}, {s(sKS)}, 1"]),
                (f'W{i}', [f"buffer_load_dwordx4 v30, {s(sWQ, 4)}, {s(sD0)} offen offset:1024 lds",
                           f"s_and_b32 {s(sKS)}, {s(sKS)}, 15"]),
                (f'W{i}', [f"buffer_load_dwordx4 v30, {s(sWQ, 4)}, {s(sD0)} offen offset:2048 lds"])]

    def dma_wo(self, j):
        return [('O', [f"s_add_u32 m0, {s(sW1024)}, {WOB + j * 4096}",
                       f"s_mov_b32 {s(sD0)}, {j * 32768}",
                       f"buffer_load_dwordx4 v31, {s(sWO, 4)}, {s(sD0)} offen lds"])]

    @staticmethod
    def cost(ln):
        op = ln.split()[0]
        if op.startswith('v_mfma'):
            return 16
        if op.startswith(('v_exp', 'v_rcp', 'v_rsq', 'ds_read_b128', 'ds_write_b128')):
            return 8
        return 4

    def weave(self, filler, queue, seq, allowed, gap, force=0):
        A = self.A
        masked = False
        for ln in filler:
            if (queue and not masked and self.since >= gap and allowed(queue[0])
                    and not ln.startswith(('s_cselect', 's_cbranch', 's_addc'))):
                tag, L, _ = queue.pop(0)
                for x in L:
                    A(x)
                seq.append(tag)
                self.since = 4 * (len(L) - 1)
            A(ln)
            if ln.startswith('s_mov_b64 exec'):
                masked = not ln.endswith('-1')
            if ln.startswith('buffer_'):
                seq.append('E')
            self.since += self.cost(ln)

    def capture(self, fn, *args):
        old = self.A.lines
        self.A.lines = []
        fn(*args)
        got = self.A.lines
        self.A.lines = old
        return got

    def consts(self):
        A = self.A
        A(f"""
        v_lshrrev_b32 v16, 3, {v(vT)}
        v_and_b32 v17, 7, {v(vT)}
        v_lshlrev_b32 v17, 7, v17
        v_lshl_add_u32 v16, v16, 10, v17
        v_and_b32 v17, 6, {v(vT)}
        v_xor_b32 v17, {v(vG)}, v17
        v_lshl_add_u32 {v(vXR)}, v17, 4, v16
        v_xor_b32 {v(vXR + 1)}, 64, {v(vXR)}
        v_add_u32 {v(vXR + 2)}, 40960, {v(vXR)}
        v_add_u32 {v(vXR + 3)}, 40960, {v(vXR + 1)}
        """)
        A(f"""
        v_bfe_u32 v16, {v(vL)}, 2, 2
        v_and_b32 v17, 2, v16
        v_and_b32 v18, 1, {v(vG)}
        v_lshl_or_b32 v17, v18, 2, v17
        v_bfe_u32 v18, {v(vL)}, 1, 1
        v_xor_b32 v17, v17, v18
        v_lshlrev_b32 v17, 4, v17
        v_lshl_add_u32 v17, v16, 7, v17
        v_and_b32 v18, 1, {v(vL)}
        v_lshl_add_u32 v17, v18, 3, v17
        v_lshl_add_u32 {v(vTRO)}, {v(vG)}, 10, v17
        v_add_u32 {v(vTRO)}, {WOB}, {v(vTRO)}
        v_xor_b32 {v(vTRO + 1)}, 32, {v(vTRO)}
        v_xor_b32 {v(vTRO + 2)}, 64, {v(vTRO)}
        v_xor_b32 {v(vTRO + 3)}, 96, {v(vTRO)}
        s_lshl_b32 {s(sT0)}, {s(sWAVE)}, 5
        v_xor_b32 v17, {s(sT0)}, v17
        v_mul_u32_u24 v18, 3072, {v(vG)}
        v_add3_u32 v15, v17, v18, 0
        v_add_u32 v15, {RING}, v15
        """)
        A(f"""
        v_lshlrev_b32 {v(vSQK)}, 2, {v(vT)}
        v_add_u32 {v(vSQK)}, {L_MEAN}, {v(vSQK)}
        v_lshlrev_b32 {v(vSV)}, 4, {v(vG)}
        v_add_u32 {v(vSV)}, {L_MEAN}, {v(vSV)}
        """)
        A(f"""
        v_mov_b32 v20, 0x3f803f80
        v_cmp_gt_u32 vcc, 8, {v(vL)}
        s_mul_i32 {s(sT0)}, {s(sWAVE)}, 20480
        v_add_u32 v16, {s(sT0)}, {v(vL16)}
        v_cndmask_b32 v20, 0, v20, vcc
        v_mov_b32 v21, v20
        v_mov_b32 v22, v20
        v_mov_b32 v23, v20
        ds_write_b128 v16, v[20:23] offset:{XIMG}
        ds_write_b128 v16, v[20:23] offset:{XIMG + 10240}
        """)
        A(f"v_lshlrev_b32 v16, 2, {v(vG)}")
        A(f"v_sub_u32 v16, {v(vT)}, v16")
        A(f"v_mov_b32 v17, {hex(NEG)}")
        A(f"s_cmp_eq_u32 {s(sB)}, 0")
        A(f"s_cselect_b64 {s(sEX, 2)}, -1, 0")
        for r in range(4):
            A(f"v_subrev_u32 v18, {r}, v16")
            A(f"v_cmp_lt_u32 vcc, 7, v18")
            A(f"v_cndmask_b32 {v(vBC + r)}, 0, v17, vcc")
            A(f"v_cmp_lt_i32 vcc, -9, v18")
            A(f"v_cndmask_b32 {v(vBP + r)}, 0, v17, vcc")
            A(f"v_cndmask_b32 {v(vBF + r)}, {v(vBP + r)}, v17, {s(sEX, 2)}")
            A(f"v_mov_b32 {v(vONE + r)}, 0x3f803f80")
            A(f"v_cmp_le_i32 vcc, 0, v18")
            if r % 2 == 0:
                A(f"v_mov_b32 v19, 0xffff")
                A(f"v_cndmask_b32 {v(vMC + r // 2)}, 0, v19, vcc")
            else:
                A(f"v_mov_b32 v19, 0xffff0000")
                A(f"v_cndmask_b32 v19, 0, v19, vcc")
                A(f"v_or_b32 {v(vMC + r // 2)}, {v(vMC + r // 2)}, v19")
        A(f"""
        v_lshrrev_b32 v16, 2, {v(vT)}
        v_cmp_eq_u32 {s(sDIAG, 2)}, v16, {v(vG)}
        v_and_b32 v16, 3, {v(vT)}
        v_cmp_eq_u32 {s(sM1, 2)}, 1, v16
        v_cmp_eq_u32 {s(sM2, 2)}, 2, v16
        v_cmp_eq_u32 {s(sM3, 2)}, 3, v16
        """)

    def diag(self, dst, G):
        A = self.A
        A(f"v_cndmask_b32 {v(dst)}, {v(G)}, {v(G + 1)}, {s(sM1, 2)}")
        A(f"v_cndmask_b32 {v(dst)}, {v(dst)}, {v(G + 2)}, {s(sM2, 2)}")
        A(f"v_cndmask_b32 {v(dst)}, {v(dst)}, {v(G + 3)}, {s(sM3, 2)}")

    def bcast_row0(self, r, tmp):
        A = self.A
        A(f"v_mov_b32 {v(tmp)}, {v(r)}")
        A(f"v_permlane16_swap_b32 {v(r)}, {v(tmp)}")
        A(f"v_mov_b32 {v(tmp)}, {v(r)}")
        A(f"v_permlane32_swap_b32 {v(r)}, {v(tmp)}")

    def qkv1(self):
        A = self.A
        XF = 72
        ACC = vTR
        aK = lambda tb: ACC + tb * 4
        aV = lambda tb: ACC + 20 + tb * 4
        aQ = lambda tb: ACC + 40 + tb * 4
        aG, aS, aG0 = ACC + 60, ACC + 64, ACC + 68
        OWN = vTR + 72
        seq = []
        queue = []
        for op in self.dma_halo(sX0, 0, ''):
            queue.append(op + (-1,))
        for i in range(16):
            if i % 2 == 0:
                queue += [op + (-1,) for op in self.dma_x(i // 2, sX0, '')]
            queue += [op + (i - 5 if i >= 6 else -1,) for op in self.dma_w(i)]
        queue += [op + (-1,) for op in self.dma_wo(15)]
        for j in range(15):
            queue += [op + (11 + j // 3,) for op in self.dma_wo(j)]
        GAP = self.o.gap
        for _ in range(self.o.burst):
            tag, L, _m = queue.pop(0)
            for x in L:
                A(x)
            seq.append(tag)
        self.since = 0
        fill = self.capture(self.consts)
        fill += [f"v_add_u32 {v(OWN + j)}, {s(sLX)}, {v(vXR + j)}" for j in range(4)]
        self.weave(fill, queue, seq, lambda op: op[2] < 0, GAP)
        while len([t for t in seq if t != 'E']) < self.o.npro:
            tag, L, _m = queue.pop(0)
            assert _m < 0
            for x in L:
                A(x)
            seq.append(tag)
        self.early()

        def mf(i):
            xb = XF + (i & 1) * 24
            x = lambda tb: v(xb + tb * 4, 4)
            W = lambda part: a((part * 16 + i) * 4, 4)
            c = (lambda r: '0') if i == 0 else (lambda r: v(r, 4))
            L = []
            for tb in range(5):
                L.append(f"v_mfma_f32_16x16x32_bf16 {v(aK(tb), 4)}, {W(1)}, {x(tb)}, {c(aK(tb))}")
                L.append(f"v_mfma_f32_16x16x32_bf16 {v(aV(tb), 4)}, {x(tb)}, {W(2)}, {c(aV(tb))}")
                L.append(f"v_mfma_f32_16x16x32_bf16 {v(aQ(tb), 4)}, {W(0)}, {x(tb)}, {c(aQ(tb))}")
            L.append(f"v_mfma_f32_16x16x32_bf16 {v(aG, 4)}, {x(5)}, {x(5)}, {c(aG)}")
            L.append(f"v_mfma_f32_16x16x32_bf16 {v(aS, 4)}, {v(vONE, 4)}, {x(5)}, {c(aS)}")
            L.append(f"v_mfma_f32_16x16x32_bf16 {v(aG0, 4)}, {x(0)}, {x(0)}, {c(aG0)}")
            return L

        for i in range(16):
            while seq.count(f'W{i}') < 3:
                tag, L, _m = queue.pop(0)
                assert _m < i
                for x in L:
                    A(x)
                seq.append(tag)
            last = max(k for k, t in enumerate(seq) if t in (f'W{i}', f'X{i >> 1}', 'H'))
            n = len(seq) - 1 - last
            A(f"s_waitcnt vmcnt({n})" + (" lgkmcnt(0)" if i == 0 else ""))
            A("s_barrier")
            if i == 0 or 'S' in self.o.exp:
                self.stamp()
            kp, par = i >> 1, i & 1
            xb = XF + par * 24
            base = vXR + (2 if kp >= 4 else 0) + par
            koff = (kp & 3) * 10240
            def tr(part):
                ar = (part * 16 + i) * 4
                return [f"ds_read_b64_tr_b16 {a(ar, 2)}, v15 offset:{phys(i) + part * 1024}",
                        f"ds_read_b64_tr_b16 {a(ar + 2, 2)}, v15 offset:{phys(i) + part * 1024 + 512}"]
            xr = lambda tb: f"ds_read_b128 {v(xb + tb * 4, 4)}, {v(base)} offset:{XIMG + koff + tb * 2048}"
            own = f"ds_read_b128 {v(xb + 20, 4)}, {v(OWN + (2 if kp >= 4 else 0) + par)} offset:{XIMG + koff}"
            reads = tr(1) + [xr(0)] + tr(2) + tr(0) + [xr(1), xr(2), xr(3), xr(4), own]
            NA = self.o.na
            mb = mf(i - 1)[NA:] if i > 0 else []
            fill = []
            k = 0
            for n_, r in enumerate(reads):
                if k < len(mb):
                    fill.append(mb[k])
                    k += 1
                fill.append(r)
            fill += mb[k:]
            ma = mf(i)[:NA]
            for n_, m_ in enumerate(ma):
                if n_ % 3 == 0:
                    fill.append(f"s_waitcnt lgkmcnt({5 - n_ // 3})")
                fill.append(m_)
            fill.append("s_waitcnt lgkmcnt(0)")
            if 'm' in self.o.exp:
                fill = [x if not x.startswith('v_mfma') else 's_nop 3' for x in fill]
            if 't' in self.o.exp:
                fill = [x for x in fill if not x.startswith('ds_read_b64_tr')]
            if 'r' in self.o.exp:
                fill = [x for x in fill if not x.startswith('ds_read_b128')]
            self.weave(fill, queue, seq, lambda op: op[2] <= i, GAP)
        self.dmaq, self.dmaseq = queue, seq
        self.weave(mf(15)[self.o.na:], queue, seq, lambda op: True, GAP)
        while queue:
            tag, L, _m = queue.pop(0)
            for x in L:
                A(x)
        self.stamp()
        self.side_issue()
        T = vTR + 76
        A(f"""
        s_sub_u32 {s(sT0)}, {s(sM)}, {s(sROT)}
        s_and_b32 {s(sT0)}, {s(sT0)}, 7
        s_mul_i32 {s(sT0)}, {s(sT0)}, 10240
        s_add_u32 {s(sT0)}, {s(sT0)}, {s(sLX)}
        v_lshrrev_b32 {v(T)}, 3, {v(vT)}
        v_and_b32 {v(T + 1)}, 7, {v(vT)}
        v_lshlrev_b32 {v(T + 1)}, 7, {v(T + 1)}
        v_lshl_add_u32 {v(T)}, {v(T)}, 10, {v(T + 1)}
        v_and_b32 {v(T + 1)}, 6, {v(vT)}
        v_lshrrev_b32 {v(T + 2)}, 1, {v(vG)}
        v_xor_b32 {v(T + 1)}, {v(T + 1)}, {v(T + 2)}
        v_lshl_add_u32 {v(T)}, {v(T + 1)}, 4, {v(T)}
        v_and_b32 {v(T + 1)}, 1, {v(vG)}
        v_lshl_add_u32 {v(T)}, {v(T + 1)}, 3, {v(T)}
        v_add_u32 {v(T)}, {s(sT0)}, {v(T)}
        """)
        for cb in range(4):
            if cb:
                A(f"v_xor_b32 {v(T + cb)}, {cb * 32}, {v(T)}")
        RX = vTR + 84
        for cb in range(4):
            A(f"ds_read_b64 {v(RX + 2 * cb, 2)}, {v(T + cb)} offset:{XIMG}")
        U = vTR + 92
        self.diag(U, aG)
        self.diag(U + 1, aG0)
        A(f"v_mov_b32 {v(U + 2)}, {v(aG0)}")
        A(f"v_mov_b32 {v(vCSV)}, {v(aV(0))}")
        self.bcast_row0(U + 2, U + 3)
        self.bcast_row0(vCSV, U + 4)
        for r in range(4):
            A(f"v_mov_b32_dpp {v(vCSQ + r)}, {v(aQ(0) + r)} row_newbcast:0 row_mask:0xf bank_mask:0xf")
            A(f"v_mov_b32_dpp {v(vCSK + r)}, {v(aK(0) + r)} row_newbcast:0 row_mask:0xf bank_mask:0xf")
        inv = hex(f2u(1.0 / 512))
        A(f"s_mov_b32 {s(sC0)}, {inv}")
        A(f"s_mov_b32 {s(sC1)}, {hex(f2u(1e-5))}")
        A(f"v_mul_f32 {v(U + 5)}, {s(sC0)}, {v(aS)}")
        A(f"v_mul_f32 {v(U + 6)}, {s(sC0)}, {v(U + 2)}")
        for k in range(2):
            A(f"v_mul_f32 {v(U + k)}, {s(sC0)}, {v(U + k)}")
        for k in range(2):
            A(f"v_fma_f32 {v(U + k)}, -{v(U + 5 + k)}, {v(U + 5 + k)}, {v(U + k)}")
        for k in range(2):
            A(f"v_max_f32 {v(U + k)}, 0, {v(U + k)}")
        for k in range(2):
            A(f"v_add_f32 {v(U + k)}, {s(sC1)}, {v(U + k)}")
        for k in range(2):
            A(f"v_rsq_f32 {v(U + k)}, {v(U + k)}")
        A(f"s_lshr_b32 {s(sT0)}, {s(sLX)}, 5")
        A(f"v_add_u32 {v(U + 7)}, {s(sT0)}, {v(vSQK)}")
        A(f"s_mov_b64 exec, {s(sDIAG, 2)}")
        A(f"ds_write2_b32 {v(U + 7)}, {v(U + 5)}, {v(U)} offset0:0 offset1:80")
        A(f"ds_write2_b32 {v(vSQK)}, {v(U + 6)}, {v(U + 1)} offset0:0 offset1:80")
        A(f"s_mov_b64 exec, -1")
        A("s_waitcnt lgkmcnt(0)")
        A("s_barrier")
        SQ = vTR + 72
        SV = 72
        for tb in range(5):
            A(f"ds_read2_b32 {v(SQ + 2 * tb, 2)}, {v(vSQK)} offset0:{tb * 16} offset1:{tb * 16 + 80}")
        for tb in range(5):
            A(f"ds_read_b128 {v(SV + 8 * tb, 4)}, {v(vSV)} offset:{tb * 64}")
            A(f"ds_read_b128 {v(SV + 8 * tb + 4, 4)}, {v(vSV)} offset:{tb * 64 + 320}")
        for cb in range(4):
            for h in range(2):
                A(f"v_lshlrev_b32 {v(vRES + cb * 4 + 2 * h)}, 16, {v(RX + 2 * cb + h)}")
                A(f"v_and_b32 {v(vRES + cb * 4 + 2 * h + 1)}, 0xffff0000, {v(RX + 2 * cb + h)}")
        A(f"s_mov_b32 {s(sC2)}, {hex(f2u(LOG2E_Q))}")
        A("s_waitcnt lgkmcnt(0)")
        for tb in range(5):
            self.epi_block(tb, aQ(tb), aK(tb), aV(tb), SQ + 2 * tb, SV + 8 * tb)

    def epi_lines(self, tb, aq, ak, av, sq, sv):
        L = []
        nm = "op_sel_hi:[1,0,1] neg_lo:[0,1,0] neg_hi:[0,1,0]"
        for h in range(2):
            L.append(f"v_pk_fma_f32 {v(ak + 2 * h, 2)}, {v(vCSK + 2 * h, 2)}, {v(sq, 2)}, {v(ak + 2 * h, 2)} {nm}")
        for h in range(2):
            L.append(f"v_pk_fma_f32 {v(av + 2 * h, 2)}, {v(sv + 2 * h, 2)}, {v(vCSV, 2)}, {v(av + 2 * h, 2)} {nm}")
        if tb:
            for h in range(2):
                L.append(f"v_pk_fma_f32 {v(aq + 2 * h, 2)}, {v(vCSQ + 2 * h, 2)}, {v(sq, 2)}, {v(aq + 2 * h, 2)} {nm}")
        for h in range(2):
            L.append(f"v_pk_mul_f32 {v(ak + 2 * h, 2)}, {v(ak + 2 * h, 2)}, {v(sq, 2)} op_sel:[0,1] op_sel_hi:[1,1]")
        for h in range(2):
            L.append(f"v_pk_mul_f32 {v(av + 2 * h, 2)}, {v(av + 2 * h, 2)}, {v(sv + 4 + 2 * h, 2)}")
        if tb:
            L.append(f"v_mul_f32 {v(vCQ + tb - 1)}, {s(sC2)}, {v(sq + 1)}")
            for h in range(2):
                L.append(f"v_cvt_pk_bf16_f32 {v(vQP + 2 * (tb - 1) + h)}, {v(aq + 2 * h)}, {v(aq + 2 * h + 1)}")
        for h in range(2):
            L.append(f"v_cvt_pk_bf16_f32 {v(vKP + 2 * tb + h)}, {v(ak + 2 * h)}, {v(ak + 2 * h + 1)}")
        for h in range(2):
            L.append(f"v_cvt_pk_bf16_f32 {v(vVP + 2 * tb + h)}, {v(av + 2 * h)}, {v(av + 2 * h + 1)}")
        return L

    def epi_block(self, *args):
        for ln in self.epi_lines(*args):
            self.A(ln)

    def early(self):
        A = self.A
        A("s_waitcnt lgkmcnt(0)")
        A(f"""
        s_mul_i32 {s(sT0)}, {s(sE0)}, 0x9e3779b1
        s_mul_i32 {s(sT1)}, {s(sE1)}, 0x85ebca77
        s_add_u32 {s(sTAG)}, {s(sT0)}, {s(sT1)}
        s_add_u32 {s(sTAG)}, {s(sTAG)}, 0x2545f491
        s_getreg_b32 {s(sT2)}, hwreg(HW_REG_XCC_ID, 0, 4)
        s_add_u32 {s(sFAST)}, {s(sTAG)}, {s(sT2)}
        """)
        skip = A.newlabel('LE')
        A(f"""
        s_cmp_lg_u32 {s(sWAVE)}, 0
        s_cbranch_scc1 {skip}
        v_mov_b32 v16, {s(sFAST)}
        s_lshl_b32 {s(sT0)}, {s(sCID)}, 3
        s_add_u32 {s(sT0)}, {s(sT0)}, {s(sM)}
        s_lshl_b32 {s(sT0)}, {s(sT0)}, 7
        s_add_u32 {s(sT0)}, {s(sT0)}, {XCC_BASE}
        s_mov_b64 exec, 1
        buffer_store_dword v16, off, {s(sWS, 4)}, {s(sT0)} sc1
        s_mov_b64 exec, -1
        """)
        A.label(skip)

    def side_issue(self):
        A = self.A
        P = 112
        T = vTR + 80
        for r in range(4):
            A(f"v_mov_b32 {v(P + r)}, -1")
        A(f"""
        s_lshl_b32 {s(sREC)}, {s(sCID)}, 2
        s_add_u32 {s(sREC)}, {s(sREC)}, {s(sWAVE)}
        s_mul_i32 {s(sGIDX)}, {s(sXX)}, 7
        s_add_u32 {s(sGIDX)}, {s(sGIDX)}, {s(sM)}
        s_sub_u32 {s(sGIDX)}, {s(sGIDX)}, 1
        s_cmp_eq_u32 {s(sM)}, 0
        s_cselect_b32 {s(sGIDX)}, -1, {s(sGIDX)}
        s_cmp_lg_u32 {s(sQ)}, {GQ}
        s_cselect_b32 {s(sGIDX)}, -1, {s(sGIDX)}
        v_cmp_gt_u32 {s(sLT2, 2)}, 2, {v(vT)}
        """)
        A(f"""
        v_lshlrev_b32 {v(T)}, 3, {v(vG)}
        s_lshl_b32 {s(sT0)}, {s(sM)}, 7
        """)
        for cb in range(4):
            A(f"buffer_load_dwordx2 {v(vWRF + 2 * cb, 2)}, {v(T)}, {s(sWR, 4)}, {s(sT0)} offen offset:{cb * 32}")
        A(f"buffer_load_dwordx4 {v(self.WRFULL, 4)}, {v(vL16)}, {s(sWR, 4)}, 0 offen")
        A(f"""
        s_cmp_eq_u32 {s(sWAVE)}, 3
        s_cselect_b32 {s(sT0)}, 15, 7
        s_cmp_eq_u32 {s(sB)}, 15
        s_cselect_b32 {s(sT0)}, 7, {s(sT0)}
        v_and_b32 v30, {s(sT0)}, {v(vL)}
        v_lshlrev_b32 v30, 7, v30
        s_lshl_b32 {s(sT0)}, {s(sCID)}, 10
        s_add_u32 {s(sT0)}, {s(sT0)}, {XCC_BASE}
        buffer_load_dword v15, v30, {s(sWS, 4)}, {s(sT0)} offen sc1
        """)
        A(f"""
        v_lshlrev_b32 {v(T)}, 18, {v(vG)}
        v_bfe_u32 {v(T + 1)}, {v(vL)}, 3, 1
        v_lshl_add_u32 {v(T)}, {v(T + 1)}, 10, {v(T)}
        v_and_b32 {v(T + 1)}, 7, {v(vL)}
        v_lshl_add_u32 {v(T)}, {v(T + 1)}, 4, {v(T)}
        s_lshl_b32 {s(sT0)}, {s(sREC)}, 11
        s_lshl_b32 {s(sT1)}, {s(sM)}, 7
        s_add_u32 {s(sT0)}, {s(sT0)}, {s(sT1)}
        s_add_u32 {s(sT0)}, {s(sT0)}, {CAND_BASE}
        s_mov_b32 exec_hi, 0
        buffer_store_dwordx4 {v(P, 4)}, {v(T)}, {s(sWS, 4)}, {s(sT0)} offen sc1
        s_mov_b64 exec, -1
        """)
        assert CAND_LAYER == 1 << 18
        skip = A.newlabel('LP')
        A(f"""
        s_cmp_lt_i32 {s(sGIDX)}, 0
        s_cbranch_scc1 {skip}
        v_lshrrev_b32 {v(T + 2)}, 1, {v(vG)}
        v_mul_u32_u24 {v(T + 2)}, {8 * N256}, {v(T + 2)}
        v_and_b32 {v(T + 3)}, 1, {v(vG)}
        v_mul_u32_u24 {v(T + 3)}, {N256}, {v(T + 3)}
        v_lshlrev_b32 {v(T + 1)}, 4, {v(vT)}
        v_add3_u32 {v(T + 2)}, {v(T + 2)}, {v(T + 3)}, {v(T + 1)}
        s_mul_i32 {s(sT0)}, {s(sWAVE)}, {2 * N256}
        s_lshl_b32 {s(sT1)}, {s(sGIDX)}, 8
        s_add_u32 {s(sT0)}, {s(sT0)}, {s(sT1)}
        s_add_u32 {s(sT0)}, {s(sT0)}, {PART_BASE}
        s_add_u32 {s(sT1)}, {s(sT0)}, {PART_LAYER}
        buffer_store_dwordx4 {v(P, 4)}, {v(T + 2)}, {s(sWS, 4)}, {s(sT0)} offen sc1
        buffer_store_dwordx4 {v(P, 4)}, {v(T + 2)}, {s(sWS, 4)}, {s(sT1)} offen sc1
        """)
        A.label(skip)
        skip = A.newlabel('LP')
        A(f"""
        s_cmp_lg_u32 s2, 0
        s_cbranch_scc1 {skip}
        s_add_u32 {s(sT0)}, {s(sW1024)}, {FIX_BASE}
        buffer_store_dwordx4 {v(P, 4)}, {v(vL16)}, {s(sWS, 4)}, {s(sT0)} offen sc1
        """)
        A.label(skip)

    WRFULL = 116

    def allreduce_rows(self, regs, tmps, op, dpp=True):
        A = self.A
        if dpp:
            for rot in (8, 4, 2, 1):
                for r in regs:
                    A(f"{op}_dpp {v(r)}, {v(r)}, {v(r)} row_ror:{rot} row_mask:0xf bank_mask:0xf")
        for sw in ('v_permlane32_swap_b32', 'v_permlane16_swap_b32'):
            for r, t in zip(regs, tmps):
                A(f"v_mov_b32 {v(t)}, {v(r)}")
            for r, t in zip(regs, tmps):
                A(f"{sw} {v(r)}, {v(t)}")
            for r, t in zip(regs, tmps):
                A(f"{op} {v(r)}, {v(r)}, {v(t)}")

    def side_finish(self):
        A = self.A
        T = vTR
        A("s_waitcnt vmcnt(0)")
        loop, ok = A.newlabel('LX'), A.newlabel('LX')
        self.spin_start()
        A(f"s_lshl_b32 {s(sT0)}, {s(sCID)}, 10")
        A(f"s_add_u32 {s(sT0)}, {s(sT0)}, {XCC_BASE}")
        A(f"s_branch {ok}")
        A.label(loop)
        A(f"buffer_load_dword v15, v30, {s(sWS, 4)}, {s(sT0)} offen sc1")
        A("s_waitcnt vmcnt(0)")
        A.label(ok)
        A(f"v_subrev_u32 {v(T)}, {s(sTAG)}, v15")
        A(f"v_cmp_le_u32 vcc, 16, {v(T)}")
        self.spin_check(loop, 1)
        A(f"""
        v_cmp_ne_u32 vcc, {s(sFAST)}, v15
        s_cmp_eq_u64 vcc, 0
        s_cselect_b32 {s(sFAST)}, 1, 0
        """)
        if self.o.slow:
            A(f"s_mov_b32 {s(sFAST)}, 0")
        W = self.WRFULL
        A(f"v_mov_b32 {v(vSW)}, 0")
        for r in range(4):
            A(f"v_dot2c_f32_bf16 {v(vSW)}, {v(W + r)}, {v(vONE)}")
        A(f"v_and_b32 {v(T)}, 3, {v(vT)}")
        A(f"v_cmp_eq_u32 vcc, 0, {v(T)}")
        for r in range(8):
            A(f"v_cndmask_b32 {v(vWRF + r)}, 0, {v(vWRF + r)}, {s(sM1, 2)}")
            A(f"v_cndmask_b32 {v(vWRF + r)}, {v(vWRF + r)}, {v(vONE)}, vcc")
        A(f"""
        v_and_b32 {v(T)}, 1, {v(vG)}
        v_lshrrev_b32 {v(T + 1)}, 1, {v(vG)}
        v_lshl_or_b32 {v(T)}, {v(T)}, 1, {v(T + 1)}
        v_lshlrev_b32 {v(T)}, 4, {v(T)}
        v_lshl_add_u32 {v(vNAT)}, {v(vT)}, 11, {v(T)}
        """)
        self.allreduce_rows([vSW], [T], 'v_add_f32')

    def attention(self):
        A = self.A
        SC = lambda qb: vTR + (qb - 1) * 8
        SP = lambda qb: vTR + (qb - 1) * 8 + 4
        MX = lambda qb: vTR + 32 + (qb - 1)
        TM = lambda qb: vTR + 36 + (qb - 1)
        PP = lambda qb: vTR + 40 + (qb - 1) * 6
        DN = lambda qb: vTR + 64 + (qb - 1) * 4
        OO = lambda qb: vTR + 80 + (qb - 1) * 4
        Q = range(1, 5)
        for qb in Q:
            q = v(vQP + 2 * (qb - 1), 2)
            A(f"v_mfma_f32_16x16x16_bf16 {v(SC(qb), 4)}, {v(vKP + 2 * qb, 2)}, {q}, {v(vBC, 4)}")
            A(f"v_mfma_f32_16x16x16_bf16 {v(SP(qb), 4)}, {v(vKP + 2 * (qb - 1), 2)}, {q}, {v(vBF if qb == 1 else vBP, 4)}")
        for qb in Q:
            for r in range(4):
                A(f"v_max_f32 {v(SC(qb) + r)}, {v(SC(qb) + r)}, {v(SP(qb) + r)}")
            A(f"v_max3_f32 {v(MX(qb))}, {v(SC(qb))}, {v(SC(qb) + 1)}, {v(SC(qb) + 2)}")
            A(f"v_max_f32 {v(MX(qb))}, {v(MX(qb))}, {v(SC(qb) + 3)}")
        for sw in ('v_permlane32_swap_b32', 'v_permlane16_swap_b32'):
            for qb in Q:
                A(f"v_mov_b32 {v(TM(qb))}, {v(MX(qb))}")
            for qb in Q:
                A(f"{sw} {v(MX(qb))}, {v(TM(qb))}")
            for qb in Q:
                A(f"v_max_f32 {v(MX(qb))}, {v(MX(qb))}, {v(TM(qb))}")
        for qb in Q:
            A(f"v_mul_f32 {v(MX(qb))}, {v(MX(qb))}, {v(vCQ + qb - 1)}")
        for qb in Q:
            for r in range(4):
                A(f"v_fma_f32 {v(SC(qb) + r)}, {v(SC(qb) + r)}, {v(vCQ + qb - 1)}, -{v(MX(qb))}")
            for r in range(4):
                A(f"v_exp_f32 {v(SC(qb) + r)}, {v(SC(qb) + r)}")
        for qb in Q:
            for h in range(2):
                A(f"v_cvt_pk_bf16_f32 {v(PP(qb) + h)}, {v(SC(qb) + 2 * h)}, {v(SC(qb) + 2 * h + 1)}")
            for h in range(2):
                A(f"v_and_b32 {v(PP(qb) + 2 + h)}, {v(PP(qb) + h)}, {v(vMC + h)}")
            for h in range(2):
                A(f"v_xor_b32 {v(PP(qb) + 4 + h)}, {v(PP(qb) + h)}, {v(PP(qb) + 2 + h)}")
            A(f"v_mfma_f32_16x16x16_bf16 {v(DN(qb), 4)}, {v(vONE, 2)}, {v(PP(qb), 2)}, 0")
            A(f"v_mfma_f32_16x16x16_bf16 {v(OO(qb), 4)}, {v(vVP + 2 * qb, 2)}, {v(PP(qb) + 2, 2)}, 0")
            A(f"v_mfma_f32_16x16x16_bf16 {v(OO(qb), 4)}, {v(vVP + 2 * (qb - 1), 2)}, {v(PP(qb) + 4, 2)}, {v(OO(qb), 4)}")
        VO = vTR + 96
        A(f"""
        v_and_b32 {v(VO)}, 1, {v(vG)}
        v_lshlrev_b32 {v(VO)}, 14, {v(VO)}
        v_lshrrev_b32 {v(VO + 1)}, 1, {v(vG)}
        v_lshl_add_u32 {v(VO)}, {v(VO + 1)}, 8, {v(VO)}
        v_lshl_add_u32 {v(VO)}, {v(vT)}, 4, {v(VO)}
        s_lshl_b32 {s(sOB)}, {s(sCID)}, 16
        s_add_u32 {s(sOB)}, {s(sOB)}, {O_BASE}
        s_lshl_b32 {s(sT0)}, {s(sM)}, 2
        s_add_u32 {s(sT0)}, {s(sT0)}, {s(sWAVE)}
        s_lshl_b32 {s(sT1)}, {s(sT0)}, 9
        s_add_u32 {s(sT1)}, {s(sT1)}, {s(sOB)}
        s_add_u32 {s(sT2)}, {s(sT1)}, 32768
        """)
        for qb in Q:
            A(f"v_rcp_f32 {v(DN(qb))}, {v(DN(qb))}")
        OP = lambda pair: vTR + pair * 4
        for qb in Q:
            for h in range(2):
                A(f"v_pk_mul_f32 {v(OO(qb) + 2 * h, 2)}, {v(OO(qb) + 2 * h, 2)}, {v(DN(qb), 2)} op_sel_hi:[1,0]")
        for qb in Q:
            pair, e = (qb - 1) // 2, (qb - 1) % 2
            for h in range(2):
                A(f"v_cvt_pk_bf16_f32 {v(OP(pair) + 2 * e + h)}, {v(OO(qb) + 2 * h)}, {v(OO(qb) + 2 * h + 1)}")
        for pair in range(2):
            for h in range(2):
                A(f"v_permlane16_swap_b32 {v(OP(pair) + h)}, {v(OP(pair) + 2 + h)}")
        self.dual([f"buffer_store_dwordx4 {v(OP(0), 4)}, {v(VO)}, {s(sWS, 4)}, {s(sT1)} offen",
                   f"buffer_store_dwordx4 {v(OP(1), 4)}, {v(VO)}, {s(sWS, 4)}, {s(sT2)} offen"])

    def flag_store(self, base_lines):
        A = self.A
        T = vTR + 99
        for ln in base_lines:
            A(ln)
        A(f"v_mov_b32 {v(T)}, {s(sTAG)}")
        A("s_mov_b64 exec, 1")
        self.dual([f"buffer_store_dword {v(T)}, off, {s(sWS, 4)}, {s(sT0)}"])
        A("s_mov_b64 exec, -1")

    def oproj(self):
        A = self.A
        OF = vTR
        ACC = vTR + 64
        WF = [120 + 4 * k for k in range(8)] + [72 + 4 * k for k in range(4)] + [vTR + 80 + 4 * k for k in range(4)]
        T = vTR + 96
        A("s_waitcnt vmcnt(0)")
        self.flag_store([f"s_lshl_b32 {s(sT3)}, {s(sLAYER)}, 12",
                         f"s_lshl_b32 {s(sT4)}, {s(sCID)}, 7",
                         f"s_add_u32 {s(sT3)}, {s(sT3)}, {s(sT4)}",
                         f"s_add_u32 {s(sT3)}, {s(sT3)}, {OFLG_BASE}",
                         f"s_lshl_b32 {s(sT0)}, {s(sT0)}, 2",
                         f"s_add_u32 {s(sT0)}, {s(sT0)}, {s(sT3)}"])
        A("s_barrier")

        def trs(ks):
            L = []
            for cb in range(4):
                r = WF[(ks & 3) * 4 + cb]
                L.append(f"ds_read_b64_tr_b16 {v(r, 2)}, {v(vTRO + cb)} offset:{ks * 4096}")
                L.append(f"ds_read_b64_tr_b16 {v(r + 2, 2)}, {v(vTRO + cb)} offset:{ks * 4096 + 512}")
            return L
        for ks in range(4):
            for ln in trs(ks):
                A(ln)
        loop = A.newlabel('LO')
        A(f"v_and_b32 {v(T)}, 31, {v(vL)}")
        A(f"v_lshlrev_b32 {v(T)}, 2, {v(T)}")
        A(f"s_lshl_b32 {s(sT1)}, {s(sWAVE)}, 14")
        A(f"s_add_u32 {s(sT1)}, {s(sT1)}, {s(sOB)}")
        self.spin_start()
        A.label(loop)
        A(f"buffer_load_dword {v(T + 1)}, {v(T)}, {s(sWS, 4)}, {s(sT3)} offen sc1")
        A("s_waitcnt vmcnt(0)")
        A(f"v_cmp_ne_u32 vcc, {s(sTAG)}, {v(T + 1)}")
        self.spin_check(loop, 2)
        self.stamp()
        for ks in range(16):
            if ks and ks % 4 == 0:
                A(f"s_add_u32 {s(sT1)}, {s(sT1)}, 4096")
            A(f"buffer_load_dwordx4 {v(OF + 4 * ks, 4)}, {v(vL16)}, {s(sWS, 4)}, {s(sT1)} offen offset:{(ks & 3) * 1024} sc1")
        for ks in range(16):
            A(f"s_waitcnt vmcnt({15 - ks}) lgkmcnt({0 if ks in (0, 14, 15) else 15 if ks < 13 else 8})")
            nxt = trs(ks + 4) if ks + 4 < 16 else []
            for cb in range(4):
                c = v(vRES + 4 * cb, 4) if ks == 0 else v(ACC + 4 * cb, 4)
                A(f"v_mfma_f32_16x16x32_bf16 {v(ACC + 4 * cb, 4)}, {v(WF[(ks & 3) * 4 + cb], 4)}, {v(OF + 4 * ks, 4)}, {c}")
                if nxt and cb >= 1:
                    A(nxt[2 * (cb - 1)])
                    A(nxt[2 * (cb - 1) + 1])
            if nxt:
                A("s_nop 0")
                A(nxt[6])
                A(nxt[7])
        self.stamp()
        D1, D2 = vTR, vTR + 4
        for k in range(8):
            A(f"v_cvt_pk_bf16_f32 {v(vX1P + k)}, {v(ACC + 2 * k)}, {v(ACC + 2 * k + 1)}")
        A(f"v_mfma_f32_16x16x32_bf16 {v(D2, 4)}, {v(vX1P, 4)}, {v(vX1P, 4)}, 0")
        A(f"v_mfma_f32_16x16x32_bf16 {v(D1, 4)}, {v(vWRF, 4)}, {v(vX1P, 4)}, 0")
        A(f"v_mfma_f32_16x16x32_bf16 {v(D2, 4)}, {v(vX1P + 4, 4)}, {v(vX1P + 4, 4)}, {v(D2, 4)}")
        A(f"v_mfma_f32_16x16x32_bf16 {v(D1, 4)}, {v(vWRF + 4, 4)}, {v(vX1P + 4, 4)}, {v(D1, 4)}")
        N = vTR + 8
        for k in range(8):
            A(f"v_mov_b32 {v(N + k)}, {v(vX1P + k)}")
        A(f"""
        s_mul_i32 {s(sT3)}, {s(sLAYER)}, {STAT_LAYER}
        s_lshl_b32 {s(sT4)}, {s(sREC)}, 11
        s_add_u32 {s(sT3)}, {s(sT3)}, {s(sT4)}
        s_add_u32 {s(sT3)}, {s(sT3)}, {STAT_BASE}
        s_lshl_b32 {s(sT4)}, {s(sM)}, 8
        s_add_u32 {s(sT4)}, {s(sT4)}, {s(sT3)}
        v_lshlrev_b32 {v(T)}, 4, {v(vT)}
        """)
        self.diag(D1 + 2, D2)
        A(f"v_mov_b32 {v(D1 + 3)}, {s(sTAG)}")
        A(f"s_mov_b64 exec, {s(sDIAG, 2)}")
        self.dual([f"buffer_store_dwordx4 {v(D1, 4)}, {v(T)}, {s(sWS, 4)}, {s(sT4)} offen"])
        A("s_mov_b64 exec, -1")
        skip = A.newlabel('LQ')
        A(f"s_cmp_lg_u32 {s(sLAYER)}, 0")
        A(f"s_cbranch_scc1 {skip}")
        self.nat_swaps(N)
        A(f"s_lshl_b32 {s(sT4)}, {s(sM)}, 7")
        A(f"s_add_u32 {s(sT4)}, {s(sT4)}, {s(sXOWN)}")
        A(f"s_add_u32 {s(sT4)}, {s(sT4)}, {X1_BASE}")
        self.dual([f"buffer_store_dwordx4 {v(N, 4)}, {v(vNAT)}, {s(sWS, 4)}, {s(sT4)} offen",
                   f"buffer_store_dwordx4 {v(N + 4, 4)}, {v(vNAT)}, {s(sWS, 4)}, {s(sT4)} offen offset:64"])
        A.label(skip)

    def nat_swaps(self, N):
        A = self.A
        for i in range(2):
            for h in range(2):
                A(f"v_permlane16_swap_b32 {v(N + 4 * i + h)}, {v(N + 4 * i + 2 + h)}")

    def stat_poll(self, G, soff, first=None):
        A = self.A
        loop = A.newlabel('LT')
        self.spin_start()
        ld = [f"buffer_load_dwordx4 {v(G, 4)}, {v(vL16)}, {s(sWS, 4)}, {s(soff)} offen sc1",
              f"buffer_load_dwordx4 {v(G + 4, 4)}, {v(vL16)}, {s(sWS, 4)}, {s(soff)} offen offset:1024 sc1",
              "s_waitcnt vmcnt(0)"]
        if first:
            chk = A.newlabel('LT')
            for ln in ld:
                A(ln)
            first()
            A(f"s_branch {chk}")
        A.label(loop)
        for ln in ld:
            A(ln)
        if first:
            A.label(chk)
        A(f"v_cmp_ne_u32 vcc, {s(sTAG)}, {v(G + 3)}")
        A(f"v_cmp_ne_u32 {s(sEX, 2)}, {s(sTAG)}, {v(G + 7)}")
        A(f"s_or_b64 vcc, vcc, {s(sEX, 2)}")
        self.spin_check(loop, 3)
        A(f"v_pk_add_f32 {v(G, 2)}, {v(G, 2)}, {v(G + 4, 2)}")
        A(f"v_add_f32 {v(G + 2)}, {v(G + 2)}, {v(G + 6)}")
        self.allreduce_rows([G, G + 1, G + 2], [G + 4, G + 5, G + 6], 'v_add_f32', dpp=False)

    def ln_stats(self, G, mean, rs1, s2, tmp):
        A = self.A
        A(f"""
        v_mul_f32 {v(mean)}, {s(sC0)}, {v(G)}
        v_mul_f32 {v(G + 2)}, {s(sC0)}, {v(G + 2)}
        v_fma_f32 {v(G + 2)}, -{v(mean)}, {v(mean)}, {v(G + 2)}
        v_max_f32 {v(G + 2)}, 0, {v(G + 2)}
        v_add_f32 {v(rs1)}, {s(sC1)}, {v(G + 2)}
        v_rsq_f32 {v(rs1)}, {v(rs1)}
        """)

    def ln_s2(self, G, rs1, s2, tmp):
        A = self.A
        A(f"""
        v_add_f32 {v(tmp)}, 1.0, {v(rs1)}
        v_mul_f32 {v(s2)}, {v(tmp)}, {v(tmp)}
        v_fma_f32 {v(s2)}, {v(s2)}, {v(G + 2)}, {s(sC1)}
        v_rsq_f32 {v(s2)}, {v(s2)}
        v_mul_f32 {v(s2)}, {v(s2)}, {v(tmp)}
        """)

    def unpack(self, dst, src, n):
        for k in range(n):
            self.A(f"v_lshlrev_b32 {v(dst + 2 * k)}, 16, {v(src + k)}")
            self.A(f"v_and_b32 {v(dst + 2 * k + 1)}, 0xffff0000, {v(src + k)}")

    def router(self):
        A = self.A
        G = vTR + 16
        MEAN, RS1 = vTR + 24, vTR + 25
        S2, TMP = vTR + 26, vTR + 27
        PR = vTR + 28
        K1, K2 = vTR + 32, vTR + 33
        H = vTR + 40
        T = vTR + 56

        def xflag():
            skip = A.newlabel('LF')
            A(f"s_cmp_lg_u32 {s(sLAYER)}, 0")
            A(f"s_cbranch_scc1 {skip}")
            self.flag_store([f"s_lshl_b32 {s(sT0)}, {s(sM)}, 2",
                             f"s_add_u32 {s(sT0)}, {s(sT0)}, {s(sWAVE)}",
                             f"s_lshl_b32 {s(sT0)}, {s(sT0)}, 2",
                             f"s_lshl_b32 {s(sT1)}, {s(sCID)}, 7",
                             f"s_add_u32 {s(sT0)}, {s(sT0)}, {s(sT1)}",
                             f"s_add_u32 {s(sT0)}, {s(sT0)}, {XFLG_BASE}"])
            A.label(skip)
        self.unpack(vRES, vX1P, 8)
        self.stat_poll(G, sT3, first=xflag)
        self.stamp()
        self.ln_stats(G, MEAN, RS1, S2, TMP)
        A(f"""
        v_fma_f32 {v(G + 1)}, -{v(MEAN)}, {v(vSW)}, {v(G + 1)}
        s_lshl_b32 {s(sT0)}, {s(sREC)}, 5
        v_lshl_or_b32 {v(T)}, {v(vT)}, 1, {s(sT0)}
        v_mul_f32 {v(G + 1)}, {v(G + 1)}, {v(RS1)}
        s_mov_b32 {s(sT1)}, 0xfffff000
        v_ashrrev_i32 {v(T + 1)}, 31, {v(G + 1)}
        v_or_b32 {v(T + 1)}, 0x80000000, {v(T + 1)}
        v_xor_b32 {v(T + 1)}, {v(T + 1)}, {v(G + 1)}
        v_and_or_b32 {v(vKEY)}, {v(T + 1)}, {s(sT1)}, {v(T)}
        v_mov_b32 {v(PR)}, {v(RS1)}
        v_mul_f32 {v(PR + 1)}, -{v(MEAN)}, {v(RS1)}
        v_mov_b32 {v(K1)}, {v(vKEY)}
        """)
        hl = [f"v_pk_fma_f32 {v(H + 2 * k, 2)}, {v(vRES + 2 * k, 2)}, {v(PR, 2)}, {v(PR, 2)} op_sel:[0,0,1] op_sel_hi:[1,0,1]" for k in range(8)]
        hl += [f"v_cvt_pk_bf16_f32 {v(vHP + k)}, {v(H + 2 * k)}, {v(H + 2 * k + 1)}" for k in range(8)]
        for rot in (8, 4, 2, 1):
            A(f"v_max_u32_dpp {v(K1)}, {v(K1)}, {v(K1)} row_ror:{rot} row_mask:0xf bank_mask:0xf")
            A(hl.pop(0))
            A(hl.pop(0))
        A(f"v_cmp_eq_u32 vcc, {v(K1)}, {v(vKEY)}")
        A(f"v_mov_b32 {v(K1 + 2)}, {s(sTAG)}")
        A(f"v_mov_b32 {v(K1 + 3)}, 0")
        A(f"v_cndmask_b32 {v(K2)}, {v(vKEY)}, {v(K1 + 3)}, vcc")
        for rot in (8, 4, 2, 1):
            A(hl.pop(0))
            A(hl.pop(0))
            A(f"v_max_u32_dpp {v(K2)}, {v(K2)}, {v(K2)} row_ror:{rot} row_mask:0xf bank_mask:0xf")
        A(f"v_cmp_eq_u32 {s(sEX, 2)}, {v(K2)}, {v(vKEY)}")
        A(f"v_or_b32 {v(K2)}, 1, {v(K2)}")
        skip = A.newlabel('LR')
        A(f"""
        s_add_u32 {s(sT0)}, {s(sWAVE)}, 4
        s_cmp_lg_u32 {s(sT0)}, {s(sM)}
        s_cbranch_scc1 {skip}
        v_lshlrev_b32 {v(T)}, 11, {v(vL)}
        s_mul_i32 {s(sT0)}, {s(sLAYER)}, {REC_LAYER}
        s_lshl_b32 {s(sT1)}, {s(sREC)}, 4
        s_add_u32 {s(sT0)}, {s(sT0)}, {s(sT1)}
        s_add_u32 {s(sT0)}, {s(sT0)}, {REC_BASE}
        s_mov_b64 exec, 0xff
        buffer_store_dwordx4 {v(K1, 4)}, {v(T)}, {s(sWS, 4)}, {s(sT0)} offen sc1
        s_mov_b64 exec, -1
        """)
        A.label(skip)
        A(f"""
        v_lshlrev_b32 {v(T + 2)}, 4, {v(vG)}
        v_add_u32 {v(T + 3)}, 1024, {v(T + 2)}
        v_cndmask_b32 {v(T + 2)}, {v(T + 2)}, {v(T + 3)}, {s(sEX, 2)}
        s_lshl_b32 {s(sT0)}, {s(sLAYER)}, 18
        s_lshl_b32 {s(sT1)}, {s(sREC)}, 11
        s_add_u32 {s(sT0)}, {s(sT0)}, {s(sT1)}
        s_lshl_b32 {s(sT1)}, {s(sM)}, 7
        s_add_u32 {s(sT0)}, {s(sT0)}, {s(sT1)}
        s_add_u32 {s(sT0)}, {s(sT0)}, {CAND_BASE}
        s_or_b64 exec, vcc, {s(sEX, 2)}
        buffer_store_dwordx4 {v(vHP, 4)}, {v(T + 2)}, {s(sWS, 4)}, {s(sT0)} offen sc1
        buffer_store_dwordx4 {v(vHP + 4, 4)}, {v(T + 2)}, {s(sWS, 4)}, {s(sT0)} offen offset:64 sc1
        s_mov_b64 exec, -1
        """)
        self.stamp()
        self.unpack(H, vHP, 8)
        for k in range(8):
            A(f"v_pk_add_f32 {v(H + 2 * k, 2)}, {v(H + 2 * k, 2)}, {v(vRES + 2 * k, 2)}")
        N = vTR + 8
        for k in range(8):
            A(f"v_cvt_pk_bf16_f32 {v(N + k)}, {v(H + 2 * k)}, {v(H + 2 * k + 1)}")
        l1, l2 = A.newlabel('LU'), A.newlabel('LU')
        A(f"s_cmp_lg_u32 {s(sLAYER)}, 0")
        A(f"s_cbranch_scc1 {l1}")
        self.unpack(vRES, N, 8)
        self.ln_s2(G, RS1, S2, TMP)
        A(f"s_lshr_b32 {s(sT0)}, {s(sLX)}, 5")
        A(f"v_add_u32 {v(T)}, {s(sT0)}, {v(vSQK)}")
        A(f"ds_write2_b32 {v(T)}, {v(MEAN)}, {v(S2)} offset0:0 offset1:80")
        A(f"s_branch {l2}")
        A.label(l1)
        self.nat_swaps(N)
        A(f"s_lshl_b32 {s(sT4)}, {s(sM)}, 7")
        A(f"s_add_u32 {s(sT4)}, {s(sT4)}, {s(sXOWN)}")
        A(f"buffer_store_dwordx4 {v(N, 4)}, {v(vNAT)}, {s(sOUT, 4)}, {s(sT4)} offen sc1")
        A(f"buffer_store_dwordx4 {v(N + 4, 4)}, {v(vNAT)}, {s(sOUT, 4)}, {s(sT4)} offen offset:64 sc1")
        A.label(l2)

    RAW = vTR

    def ffn_wload(self):
        A = self.A
        T = vTR + 96
        A(f"""
        v_mul_u32_u24 {v(T)}, 3584, {v(vT)}
        v_lshl_add_u32 {v(T)}, {v(vG)}, 4, {v(T)}
        v_lshlrev_b32 {v(T + 1)}, 10, {v(vT)}
        v_lshl_add_u32 {v(T + 1)}, {v(vG)}, 4, {v(T + 1)}
        s_mul_i32 {s(sT0)}, {s(sWAVE)}, {128 * 3584}
        s_lshl_b32 {s(sT1)}, {s(sGIDX)}, 6
        s_add_u32 {s(sT0)}, {s(sT0)}, {s(sT1)}
        """)
        for j in range(8):
            if j:
                A(f"s_add_u32 {s(sT0)}, {s(sT0)}, {16 * 3584}")
            A(f"buffer_load_dwordx4 {v(self.RAW + 4 * j, 4)}, {v(T)}, {s(sWG, 4)}, {s(sT0)} offen")
            A(f"buffer_load_dwordx4 {v(self.RAW + 32 + 4 * j, 4)}, {v(T)}, {s(sWU, 4)}, {s(sT0)} offen")
        A(f"""
        s_lshl_b32 {s(sT0)}, {s(sGIDX)}, 15
        s_lshl_b32 {s(sT1)}, {s(sWAVE)}, 8
        s_add_u32 {s(sT0)}, {s(sT0)}, {s(sT1)}
        s_add_u32 {s(sT1)}, {s(sT0)}, 16384
        """)
        for c in range(4):
            for h in range(2):
                A(f"buffer_load_dwordx4 {v(self.RAW + 64 + 8 * c + 4 * h, 4)}, {v(T + 1)}, {s(sWD, 4)}, {s(sT1 if h else sT0)} offen offset:{64 * c}")

    def ffn_wtrans(self):
        A = self.A
        SEL = 120
        D = 128
        C = 144
        T = 148
        A(f"v_lshlrev_b32 {v(T)}, 3, {v(vG)}")
        A(f"v_sub_u32 {v(T)}, {v(vT)}, {v(T)}")
        A(f"v_mov_b32 {v(T + 2)}, 0x3f80")
        A(f"v_mov_b32 {v(T + 3)}, 0x3f800000")
        for e in range(2):
            for r in range(4):
                A(f"v_cmp_eq_u32 vcc, {2 * r - 16 * e}, {v(T)}")
                A(f"v_cmp_eq_u32 {s(sEX, 2)}, {2 * r + 1 - 16 * e}, {v(T)}")
                A(f"v_cndmask_b32 {v(SEL + 4 * e + r)}, 0, {v(T + 2)}, vcc")
                A(f"v_cndmask_b32 {v(SEL + 4 * e + r)}, {v(SEL + 4 * e + r)}, {v(T + 3)}, {s(sEX, 2)}")
        jobs = []
        for mat in range(2):
            for j in range(8):
                for e in range(2):
                    jobs.append((self.RAW + 32 * mat + 4 * j, e, 'a', 192 + ((mat * 2 + e) * 4 + j // 2) * 4 + 2 * (j & 1)))
        for c in range(4):
            for h in range(2):
                for e in range(2):
                    jobs.append((self.RAW + 64 + 8 * c + 4 * h, e, 'v', vWD + (2 * c + e) * 4 + 2 * h))
        LAG = 3
        for n in range(len(jobs) + LAG):
            if n < len(jobs):
                raw, e, _, _ = jobs[n]
                A(f"v_mfma_f32_16x16x32_bf16 {v(D + 4 * (n & 3), 4)}, {v(raw, 4)}, {v(SEL + 4 * e, 4)}, 0")
            if n >= LAG:
                k = n - LAG
                _, _, kind, dst = jobs[k]
                d = D + 4 * (k & 3)
                if kind == 'v':
                    A(f"v_cvt_pk_bf16_f32 {v(dst)}, {v(d)}, {v(d + 1)}")
                    A(f"v_cvt_pk_bf16_f32 {v(dst + 1)}, {v(d + 2)}, {v(d + 3)}")
                else:
                    c_ = C + 2 * (k & 1)
                    A(f"v_cvt_pk_bf16_f32 {v(c_)}, {v(d)}, {v(d + 1)}")
                    A(f"v_cvt_pk_bf16_f32 {v(c_ + 1)}, {v(d + 2)}, {v(d + 3)}")
                    A(f"v_accvgpr_write_b32 {a(dst)}, {v(c_)}")
                    A(f"v_accvgpr_write_b32 {a(dst + 1)}, {v(c_ + 1)}")

    def ximage(self):
        A = self.A
        T = 144
        loop = A.newlabel('LI')
        A(f"""
        v_and_b32 {v(T)}, 31, {v(vL)}
        v_lshlrev_b32 {v(T)}, 2, {v(T)}
        v_add_u32 {v(T)}, 128, {v(T)}
        v_and_b32 {v(T + 1)}, 7, {v(vL)}
        v_lshl_or_b32 {v(T + 1)}, {v(T + 1)}, 4, 12
        s_cmp_eq_u32 {s(sB)}, 0
        s_cselect_b32 {s(sT0)}, 64, 32
        v_cmp_le_u32 vcc, {s(sT0)}, {v(vL)}
        s_lshl_b32 {s(sT0)}, {s(sCID)}, 7
        s_add_u32 {s(sT0)}, {s(sT0)}, {XFLG_BASE - 128}
        v_cndmask_b32 {v(T)}, {v(T)}, {v(T + 1)}, vcc
        """)
        self.spin_start()
        A.label(loop)
        A(f"buffer_load_dword {v(T + 1)}, {v(T)}, {s(sWS, 4)}, {s(sT0)} offen sc1")
        A("s_waitcnt vmcnt(0)")
        A(f"v_cmp_ne_u32 vcc, {s(sTAG)}, {v(T + 1)}")
        self.spin_check(loop, 4)
        A(f"s_lshl_b32 {s(sKX)}, {s(sROT)}, 7")
        A(f"s_add_u32 {s(sXOWN)}, {s(sXOWN)}, {X1_BASE}")
        for P in range(8):
            for tag, L in self.dma_x(P, sWS, ' sc1'):
                for x in L:
                    A(x)
        A(f"s_sub_u32 {s(sXOWN)}, {s(sXOWN)}, {X1_BASE}")
        for tag, L in self.dma_halo(sWS, X1_BASE, ' sc1'):
            for x in L:
                A(x)
        skip = A.newlabel('LH')
        G = 120
        A(f"""
        s_cmp_lg_u32 {s(sWAVE)}, 0
        s_cbranch_scc1 {skip}
        s_cmp_eq_u32 {s(sB)}, 0
        s_cbranch_scc1 {skip}
        s_lshl_b32 {s(sT3)}, {s(sCID)}, 13
        s_add_u32 {s(sT3)}, {s(sT3)}, {STAT_BASE - 2048}
        """)
        self.stat_poll(G, sT3)
        self.ln_stats(G, G + 8, G + 9, G + 10, G + 11)
        self.ln_s2(G, G + 9, G + 10, G + 11)
        A(f"ds_write2_b32 {v(vSQK)}, {v(G + 8)}, {v(G + 10)} offset0:0 offset1:80")
        A.label(skip)

    def top2(self):
        A = self.A
        G = vTR + 64
        loop = A.newlabel('LK')
        A(f"""
        s_mul_i32 {s(sT0)}, {s(sLAYER)}, {REC_LAYER}
        s_lshl_b32 {s(sT1)}, {s(sXX)}, 11
        s_add_u32 {s(sT0)}, {s(sT0)}, {s(sT1)}
        s_add_u32 {s(sT0)}, {s(sT0)}, {REC_BASE}
        """)
        self.spin_start()
        A.label(loop)
        A(f"""
        buffer_load_dwordx4 {v(G, 4)}, {v(vL16)}, {s(sWS, 4)}, {s(sT0)} offen sc1
        buffer_load_dwordx4 {v(G + 4, 4)}, {v(vL16)}, {s(sWS, 4)}, {s(sT0)} offen offset:1024 sc1
        s_waitcnt vmcnt(0)
        v_cmp_ne_u32 vcc, {s(sTAG)}, {v(G + 2)}
        v_cmp_ne_u32 {s(sEX, 2)}, {s(sTAG)}, {v(G + 6)}
        s_or_b64 vcc, vcc, {s(sEX, 2)}
        """)
        self.spin_check(loop, 5)
        M, N_, T = G + 8, G + 9, G + 10
        A(f"v_max_u32 {v(M)}, {v(G)}, {v(G + 4)}")
        A(f"v_min_u32 {v(N_)}, {v(G)}, {v(G + 4)}")
        A(f"v_mov_b32 {v(T + 1)}, {v(M)}")
        A(f"v_max3_u32 {v(N_)}, {v(N_)}, {v(G + 1)}, {v(G + 5)}")
        self.allreduce_rows([M], [T], 'v_max_u32')
        A(f"v_cmp_eq_u32 vcc, {v(M)}, {v(T + 1)}")
        A(f"v_readfirstlane_b32 {s(sK1)}, {v(M)}")
        A(f"v_cndmask_b32 {v(N_)}, {v(T + 1)}, {v(N_)}, vcc")
        self.allreduce_rows([N_], [T], 'v_max_u32')
        A(f"v_readfirstlane_b32 {s(sK2)}, {v(N_)}")

    def cand_off(self, dst, key):
        A = self.A
        A(f"s_bfe_u32 {s(dst)}, {s(key)}, {5 | (7 << 16)}")
        A(f"s_lshl_b32 {s(dst)}, {s(dst)}, 1")
        A(f"s_and_b32 {s(sT7)}, {s(key)}, 1")
        A(f"s_add_u32 {s(dst)}, {s(dst)}, {s(sT7)}")
        A(f"s_lshl_b32 {s(dst)}, {s(dst)}, 10")

    def bf16r(self, r):
        self.A(f"v_cvt_pk_bf16_f32 {v(r)}, {v(r)}, {v(r)}")
        self.A(f"v_and_b32 {v(r)}, 0xffff0000, {v(r)}")

    def ffn(self):
        A = self.A
        HF = vTR
        D = vTR + 16
        T = vTR + 32
        O = vTR + 48
        self.cand_off(sT0, sK1)
        self.cand_off(sT1, sK2)
        A(f"""
        v_and_b32 {v(T)}, 1, {v(vL)}
        v_cmp_eq_u32 vcc, 1, {v(T)}
        v_mov_b32 {v(T)}, {s(sT0)}
        v_mov_b32 {v(T + 1)}, {s(sT1)}
        v_cndmask_b32 {v(T)}, {v(T)}, {v(T + 1)}, vcc
        v_lshl_add_u32 {v(T)}, {v(vG)}, 4, {v(T)}
        s_lshl_b32 {s(sT0)}, {s(sLAYER)}, 18
        s_lshl_b32 {s(sT1)}, {s(sWAVE)}, 8
        s_add_u32 {s(sT0)}, {s(sT0)}, {s(sT1)}
        s_add_u32 {s(sT0)}, {s(sT0)}, {CAND_BASE}
        """)
        loop = A.newlabel('LC')
        self.spin_start()
        A.label(loop)
        for jj in range(4):
            A(f"buffer_load_dwordx4 {v(HF + 4 * jj, 4)}, {v(T)}, {s(sWS, 4)}, {s(sT0)} offen offset:{64 * jj} sc1")
        A("s_waitcnt vmcnt(0)")
        A(f"v_max3_u32 {v(T + 1)}, {v(HF)}, {v(HF + 1)}, {v(HF + 2)}")
        for k in range(3, 15, 2):
            A(f"v_max3_u32 {v(T + 1)}, {v(T + 1)}, {v(HF + k)}, {v(HF + k + 1)}")
        A(f"v_max_u32 {v(T + 1)}, {v(T + 1)}, {v(HF + 15)}")
        A(f"v_cmp_eq_u32 vcc, -1, {v(T + 1)}")
        self.spin_check(loop, 6)
        self.stamp()
        for jj in range(4):
            for me in range(4):
                c = '0' if jj == 0 else v(D + 4 * me, 4)
                A(f"v_mfma_f32_16x16x32_bf16 {v(D + 4 * me, 4)}, {a(192 + (me * 4 + jj) * 4, 4)}, {v(HF + 4 * jj, 4)}, {c}")
        A(f"""
        v_lshlrev_b32 {v(T)}, 7, {v(vT)}
        v_lshl_add_u32 {v(T)}, {v(vG)}, 4, {v(T)}
        s_lshl_b32 {s(sT1)}, {s(sWAVE)}, 9
        s_add_u32 {s(sT1)}, {s(sT1)}, {L_FP}
        v_add_u32 {v(T)}, {s(sT1)}, {v(T)}
        v_lshlrev_b32 {v(T + 1)}, 2, {v(vL)}
        v_add_u32 {v(T + 1)}, {L_FP}, {v(T + 1)}
        s_mov_b64 exec, {s(sLT2, 2)}
        """)
        for me in range(4):
            A(f"ds_write_b128 {v(T)}, {v(D + 4 * me, 4)} offset:{(me >> 1) * 256 + (me & 1) * 64}")
        A("s_mov_b64 exec, -1")
        A(f"""
        v_lshrrev_b32 {v(T + 2)}, 5, {v(vL)}
        v_lshlrev_b32 {v(T + 2)}, 6, {v(T + 2)}
        v_bfe_u32 {v(T + 3)}, {v(vL)}, 2, 2
        v_lshl_add_u32 {v(T + 2)}, {v(T + 3)}, 4, {v(T + 2)}
        v_bfe_u32 {v(T + 3)}, {v(vL)}, 4, 1
        v_lshl_add_u32 {v(T + 2)}, {v(T + 3)}, 3, {v(T + 2)}
        v_and_b32 {v(T + 3)}, 3, {v(vL)}
        v_lshl_add_u32 {v(T + 2)}, {v(T + 3)}, 1, {v(T + 2)}
        s_lshl_b32 {s(sT1)}, {s(sWAVE)}, 8
        s_add_u32 {s(sT1)}, {s(sT1)}, {L_PRIV}
        v_add_u32 {v(T + 2)}, {s(sT1)}, {v(T + 2)}
        v_and_b32 {v(T + 3)}, 1, {v(vL)}
        v_lshlrev_b32 {v(T + 3)}, 6, {v(T + 3)}
        v_lshl_add_u32 {v(T + 3)}, {v(vG)}, 4, {v(T + 3)}
        v_add_u32 {v(T + 3)}, {s(sT1)}, {v(T + 3)}
        s_waitcnt lgkmcnt(0)
        s_barrier
        """)
        for w_ in range(4):
            A(f"ds_read2st64_b32 {v(D + 2 * w_, 2)}, {v(T + 1)} offset0:{2 * w_} offset1:{2 * w_ + 1}")
        A(f"s_mov_b32 {s(sT2)}, {hex(f2u(-1.4426950408889634))}")
        A("s_waitcnt lgkmcnt(0)")
        A(f"v_pk_add_f32 {v(D, 2)}, {v(D, 2)}, {v(D + 2, 2)}")
        A(f"v_pk_add_f32 {v(D + 4, 2)}, {v(D + 4, 2)}, {v(D + 6, 2)}")
        A(f"v_pk_add_f32 {v(D, 2)}, {v(D, 2)}, {v(D + 4, 2)}")
        A(f"v_cvt_pk_bf16_f32 {v(D + 2)}, {v(D)}, {v(D + 1)}")
        A(f"v_lshlrev_b32 {v(D)}, 16, {v(D + 2)}")
        A(f"v_and_b32 {v(D + 1)}, 0xffff0000, {v(D + 2)}")
        A(f"v_mul_f32 {v(D + 2)}, {s(sT2)}, {v(D)}")
        A(f"v_exp_f32 {v(D + 2)}, {v(D + 2)}")
        A(f"v_add_f32 {v(D + 2)}, 1.0, {v(D + 2)}")
        A(f"v_rcp_f32 {v(D + 2)}, {v(D + 2)}")
        A(f"v_mul_f32 {v(D)}, {v(D)}, {v(D + 2)}")
        self.bf16r(D)
        A(f"v_mul_f32 {v(D)}, {v(D)}, {v(D + 1)}")
        A(f"v_cvt_pk_bf16_f32 {v(D)}, {v(D)}, {v(D)}")
        A(f"ds_write_b16 {v(T + 2)}, {v(D)}")
        A(f"""
        v_mul_u32_u24 {v(T)}, {8 * N256}, {v(vT)}
        v_lshl_add_u32 {v(T)}, {v(vG)}, 4, {v(T)}
        s_mul_i32 {s(sT0)}, {s(sLAYER)}, {PART_LAYER}
        s_mul_i32 {s(sT1)}, {s(sWAVE)}, {2 * N256}
        s_add_u32 {s(sT0)}, {s(sT0)}, {s(sT1)}
        s_lshl_b32 {s(sT1)}, {s(sGIDX)}, 8
        s_add_u32 {s(sT0)}, {s(sT0)}, {s(sT1)}
        s_add_u32 {s(sT0)}, {s(sT0)}, {PART_BASE}
        s_add_u32 {s(sT1)}, {s(sT0)}, {N256}
        s_waitcnt lgkmcnt(0)
        ds_read_b128 {v(HF, 4)}, {v(T + 3)}
        s_waitcnt lgkmcnt(0)
        """)
        for j in range(8):
            A(f"v_mfma_f32_16x16x32_bf16 {v(O + 4 * j, 4)}, {v(vWD + 4 * j, 4)}, {v(HF, 4)}, 0")
        A(f"s_mov_b64 exec, {s(sLT2, 2)}")
        for j in range(8):
            A(f"buffer_store_dwordx4 {v(O + 4 * j, 4)}, {v(T)}, {s(sWS, 4)}, {s(sT1 if j >= 4 else sT0)} offen offset:{(j & 3) * 64} sc1")
        A("s_mov_b64 exec, -1")

    def qkv_block(self):
        A = self.A
        B = vTR
        SQ, SV = vTR + 4, vTR + 8
        XF = vTR + 16
        AQ, AK, AV = vTR + 40, vTR + 44, vTR + 48
        T = vTR + 52
        A(f"s_lshl_b32 {s(sT0)}, {s(sT5)}, 11")
        for j in range(4):
            A(f"v_add_u32 {v(B + j)}, {s(sT0)}, {v(vXR + j)}")
        A(f"s_lshl_b32 {s(sT0)}, {s(sT5)}, 6")
        rd = lambda i: f"ds_read_b128 {v(XF + 4 * (i % 6), 4)}, {v(B + (2 if i >= 8 else 0) + (i & 1))} offset:{XIMG + ((i >> 1) & 3) * 10240}"
        for i in range(5):
            A(rd(i))
        A(f"v_add_u32 {v(T)}, {s(sT0)}, {v(vSQK)}")
        A(f"v_add_u32 {v(T + 1)}, {s(sT0)}, {v(vSV)}")
        for i in range(16):
            n_out = min(15 - i, 4) + (3 if i >= 11 else 0)
            A(f"s_waitcnt lgkmcnt({n_out})")
            x = v(XF + 4 * (i % 6), 4)
            c = (lambda r: '0') if i == 0 else (lambda r: v(r, 4))
            A(f"v_mfma_f32_16x16x32_bf16 {v(AK, 4)}, {a((16 + i) * 4, 4)}, {x}, {c(AK)}")
            if i + 5 < 16:
                A(rd(i + 5))
            if i == 10:
                A(f"ds_read2_b32 {v(SQ, 2)}, {v(T)} offset0:0 offset1:80")
                A(f"ds_read_b128 {v(SV, 4)}, {v(T + 1)}")
                A(f"ds_read_b128 {v(SV + 4, 4)}, {v(T + 1)} offset:320")
            A(f"v_mfma_f32_16x16x32_bf16 {v(AV, 4)}, {x}, {a((32 + i) * 4, 4)}, {c(AV)}")
            A(f"v_mfma_f32_16x16x32_bf16 {v(AQ, 4)}, {a(i * 4, 4)}, {x}, {c(AQ)}")
        A("s_waitcnt lgkmcnt(0)")
        ep = self.epi_lines(1, AQ, AK, AV, SQ, SV)
        common = [x for x in ep if x.startswith('v_pk')]
        for x in common:
            A(x)
        done = A.newlabel('LB')
        for tb in range(5):
            nxt = A.newlabel('LB')
            if tb < 4:
                A(f"s_cmp_lg_u32 {s(sT5)}, {tb}")
                A(f"s_cbranch_scc1 {nxt}")
            for x in self.epi_lines(tb, AQ, AK, AV, SQ, SV):
                if not x.startswith('v_pk'):
                    A(x)
            if tb < 4:
                A(f"s_branch {done}")
                A.label(nxt)
        A.label(done)

    def owner(self):
        A = self.A
        GA = vTR
        Y = vTR + 56
        T = vTR + 72
        N = vTR + 80
        H = vTR + 88
        top, nxt = A.newlabel('LW'), A.newlabel('LW')
        A(f"s_mov_b32 {s(sSLOT)}, 0")
        A(f"s_mov_b32 {s(sKK)}, {s(sK1)}")
        A.label(top)
        A(f"""
        s_bfe_u32 {s(sT0)}, {s(sKK)}, {5 | (7 << 16)}
        s_cmp_lg_u32 {s(sT0)}, {s(sREC)}
        s_cbranch_scc1 {nxt}
        s_mul_i32 {s(sT0)}, {s(sLAYER)}, {PART_LAYER}
        s_lshl_b32 {s(sT1)}, {s(sSLOT)}, 3
        s_add_u32 {s(sT1)}, {s(sT1)}, {s(sM)}
        s_mul_i32 {s(sT1)}, {s(sT1)}, {N256}
        s_add_u32 {s(sT0)}, {s(sT0)}, {s(sT1)}
        s_add_u32 {s(sT2)}, {s(sT0)}, {PART_BASE}
        """)
        A(f"""
        s_and_b32 {s(sT0)}, {s(sKK)}, 0xfffff000
        s_ashr_i32 {s(sT1)}, {s(sT0)}, 31
        s_not_b32 {s(sT1)}, {s(sT1)}
        s_or_b32 {s(sT1)}, {s(sT1)}, 0x80000000
        s_xor_b32 {s(sT0)}, {s(sT0)}, {s(sT1)}
        v_mov_b32 {v(T)}, {s(sT0)}
        """)
        self.bf16r(T)
        A(f"v_mul_f32 {v(T)}, {hex(f2u(-1.4426950408889634))}, {v(T)}")
        A(f"v_exp_f32 {v(T)}, {v(T)}")
        A(f"v_add_f32 {v(T)}, 1.0, {v(T)}")
        A(f"v_rcp_f32 {v(T)}, {v(T)}")
        self.bf16r(T)
        A(f"""
        s_lshl_b32 {s(sT1)}, {s(sWAVE)}, 8
        s_add_u32 {s(sT1)}, {s(sT1)}, {L_PRIV}
        v_lshlrev_b32 {v(T + 2)}, 4, {v(vT)}
        v_add_u32 {v(T + 2)}, {s(sT1)}, {v(T + 2)}
        v_lshlrev_b32 {v(T + 3)}, 4, {v(vG)}
        v_add_u32 {v(T + 3)}, {s(sT1)}, {v(T + 3)}
        """)
        loop = A.newlabel('LG')
        self.spin_start()
        A.label(loop)
        A(f"s_mov_b32 {s(sT0)}, {s(sT2)}")
        for j in range(14):
            if j and j % 4 == 0:
                A(f"s_add_u32 {s(sT0)}, {s(sT0)}, 4096")
            A(f"buffer_load_dwordx4 {v(GA + 4 * j, 4)}, {v(vL16)}, {s(sWS, 4)}, {s(sT0)} offen offset:{(j & 3) * 1024} sc1")
        for j in range(1, 14):
            A(f"s_waitcnt vmcnt({13 - j})")
            A(f"v_pk_add_f32 {v(GA, 2)}, {v(GA, 2)}, {v(GA + 4 * j, 2)}")
            A(f"v_pk_add_f32 {v(GA + 2, 2)}, {v(GA + 2, 2)}, {v(GA + 4 * j + 2, 2)}")
        A(f"v_add_f32 {v(GA + 4)}, {v(GA)}, {v(GA + 1)}")
        A(f"v_add_f32 {v(GA + 5)}, {v(GA + 2)}, {v(GA + 3)}")
        A(f"v_cmp_u_f32 vcc, {v(GA + 4)}, {v(GA + 5)}")
        self.spin_check(loop, 7)
        self.stamp()
        self.allreduce_rows([GA, GA + 1, GA + 2, GA + 3], [GA + 4, GA + 5, GA + 6, GA + 7], 'v_add_f32', dpp=False)
        A(f"v_cvt_pk_bf16_f32 {v(GA + 4)}, {v(GA)}, {v(GA + 1)}")
        A(f"v_cvt_pk_bf16_f32 {v(GA + 5)}, {v(GA + 2)}, {v(GA + 3)}")
        self.unpack(GA, GA + 4, 2)
        A(f"v_pk_mul_f32 {v(GA, 2)}, {v(GA, 2)}, {v(T, 2)} op_sel_hi:[1,0]")
        A(f"v_pk_mul_f32 {v(GA + 2, 2)}, {v(GA + 2, 2)}, {v(T, 2)} op_sel_hi:[1,0]")
        A(f"v_cvt_pk_bf16_f32 {v(GA + 4)}, {v(GA)}, {v(GA + 1)}")
        A(f"v_cvt_pk_bf16_f32 {v(GA + 5)}, {v(GA + 2)}, {v(GA + 3)}")
        self.unpack(GA, GA + 4, 2)
        A(f"ds_write_b128 {v(T + 2)}, {v(GA, 4)}")
        HH, XX = vTR + 8, vTR + 24
        self.unpack(HH, vHP, 8)
        A("s_waitcnt lgkmcnt(0)")
        for cb in range(4):
            A(f"ds_read_b128 {v(Y + 4 * cb, 4)}, {v(T + 3)} offset:{cb * 64}")
        self.unpack(XX, vX1P, 8)
        A(f"s_bfe_u32 {s(sT0)}, {s(sKK)}, {1 | (4 << 16)}")
        A(f"v_cmp_eq_u32 {s(sEX, 2)}, {s(sT0)}, {v(vT)}")
        A("s_waitcnt lgkmcnt(0)")
        for k in range(8):
            A(f"v_pk_add_f32 {v(HH + 2 * k, 2)}, {v(HH + 2 * k, 2)}, {v(Y + 2 * k, 2)}")
        for k in range(8):
            A(f"v_cvt_pk_bf16_f32 {v(N + k)}, {v(HH + 2 * k)}, {v(HH + 2 * k + 1)}")
        self.unpack(HH, N, 8)
        for k in range(8):
            A(f"v_pk_add_f32 {v(HH + 2 * k, 2)}, {v(HH + 2 * k, 2)}, {v(XX + 2 * k, 2)}")
        for k in range(8):
            A(f"v_cvt_pk_bf16_f32 {v(N + k)}, {v(HH + 2 * k)}, {v(HH + 2 * k + 1)}")
        l1 = A.newlabel('LW')
        l2 = A.newlabel('LW')
        A(f"s_cmp_lg_u32 {s(sLAYER)}, 0")
        A(f"s_cbranch_scc1 {l1}")
        A(f"s_mov_b64 exec, {s(sEX, 2)}")
        self.unpack(vRES, N, 8)
        A("s_mov_b64 exec, -1")
        self.nat_swaps(N)
        A(f"""
        v_and_b32 {v(T)}, 0x7ff, {v(vNAT)}
        s_lshl_b32 {s(sT0)}, {s(sSLOT)}, 11
        s_lshl_b32 {s(sT1)}, {s(sM)}, 7
        s_add_u32 {s(sT0)}, {s(sT0)}, {s(sT1)}
        s_add_u32 {s(sT0)}, {s(sT0)}, {FIX_BASE}
        s_mov_b64 exec, {s(sEX, 2)}
        """)
        self.dual([f"buffer_store_dwordx4 {v(N, 4)}, {v(T)}, {s(sWS, 4)}, {s(sT0)} offen",
                   f"buffer_store_dwordx4 {v(N + 4, 4)}, {v(T)}, {s(sWS, 4)}, {s(sT0)} offen offset:64"])
        A(f"buffer_store_dwordx4 {v(N, 4)}, {v(T)}, {s(sWS, 4)}, {s(sT0)} offen offset:1024 sc1")
        A(f"buffer_store_dwordx4 {v(N + 4, 4)}, {v(T)}, {s(sWS, 4)}, {s(sT0)} offen offset:1088 sc1")
        A("s_mov_b64 exec, -1")
        A(f"s_branch {nxt}")
        A.label(l1)
        self.nat_swaps(N)
        A(f"""
        s_lshl_b32 {s(sT4)}, {s(sM)}, 7
        s_add_u32 {s(sT4)}, {s(sT4)}, {s(sXOWN)}
        s_mov_b64 exec, {s(sEX, 2)}
        buffer_store_dwordx4 {v(N, 4)}, {v(vNAT)}, {s(sOUT, 4)}, {s(sT4)} offen sc1
        buffer_store_dwordx4 {v(N + 4, 4)}, {v(vNAT)}, {s(sOUT, 4)}, {s(sT4)} offen offset:64 sc1
        s_mov_b64 exec, -1
        """)
        A.label(nxt)
        A(f"""
        s_mov_b32 {s(sKK)}, {s(sK2)}
        s_add_u32 {s(sSLOT)}, {s(sSLOT)}, 1
        s_cmp_lt_u32 {s(sSLOT)}, 2
        s_cbranch_scc1 {top}
        """)

    def aff_block(self, key, dst):
        A = self.A
        A(f"""
        s_bfe_u32 {s(sT0)}, {s(key)}, {7 | (5 << 16)}
        s_bfe_u32 {s(sT1)}, {s(key)}, {5 | (2 << 16)}
        s_add_u32 {s(dst)}, {s(sT1)}, 1
        s_cmp_eq_u32 {s(sT0)}, {s(sCID)}
        s_cselect_b32 {s(dst)}, {s(dst)}, -1
        s_bfe_u32 {s(sT1)}, {s(key)}, {1 | (6 << 16)}
        s_add_u32 {s(sT0)}, {s(sT0)}, 1
        s_cmp_ge_u32 {s(sT1)}, 57
        s_cselect_b32 {s(sT0)}, {s(sT0)}, -1
        s_cmp_eq_u32 {s(sB)}, 0
        s_cselect_b32 {s(sT0)}, -1, {s(sT0)}
        s_cmp_eq_u32 {s(sT0)}, {s(sCID)}
        s_cselect_b32 {s(dst)}, 0, {s(dst)}
        """)

    def fixup(self):
        A = self.A
        R = vTR
        T = vTR + 8
        self.aff_block(sK1, sT5)
        self.aff_block(sK2, sT6)
        A(f"""
        s_mov_b32 {s(sMASK)}, 0
        s_lshl_b32 {s(sT0)}, 1, {s(sT5)}
        s_cmp_lt_i32 {s(sT5)}, 0
        s_cselect_b32 {s(sMASK)}, 0, {s(sT0)}
        s_lshl_b32 {s(sT0)}, 1, {s(sT6)}
        s_cmp_lt_i32 {s(sT6)}, 0
        s_cselect_b32 {s(sT0)}, 0, {s(sT0)}
        s_or_b32 {s(sMASK)}, {s(sMASK)}, {s(sT0)}
        s_cbranch_scc0 L_NEXT
        """)
        skip = A.newlabel('LZ')
        A(f"""
        s_cmp_eq_u32 {s(sWAVE)}, 0
        s_cselect_b32 {s(sT5)}, {s(sT5)}, {s(sT6)}
        s_cselect_b32 {s(sKK)}, {s(sK1)}, {s(sK2)}
        s_cmp_ge_u32 {s(sWAVE)}, 2
        s_cbranch_scc1 {skip}
        s_cmp_lt_i32 {s(sT5)}, 0
        s_cbranch_scc1 {skip}
        s_lshl_b32 {s(sT0)}, {s(sWAVE)}, 11
        s_add_u32 {s(sT0)}, {s(sT0)}, {FIX_BASE}
        s_add_u32 {s(sT1)}, {s(sT0)}, 1024
        s_cmp_eq_u32 {s(sT5)}, 0
        s_cselect_b32 {s(sT0)}, {s(sT1)}, {s(sT0)}
        s_bfe_u32 {s(sT1)}, {s(sKK)}, {1 | (4 << 16)}
        v_lshrrev_b32 {v(T)}, 3, {v(vL)}
        v_subrev_u32 {v(T)}, {s(sROT)}, {v(T)}
        v_and_b32 {v(T)}, 7, {v(T)}
        v_mul_u32_u24 {v(T)}, 10240, {v(T)}
        s_and_b32 {s(sT2)}, {s(sT1)}, 6
        v_and_b32 {v(T + 1)}, 7, {v(vL)}
        v_xor_b32 {v(T + 1)}, {s(sT2)}, {v(T + 1)}
        v_lshl_add_u32 {v(T)}, {v(T + 1)}, 4, {v(T)}
        s_lshl_b32 {s(sT2)}, {s(sT5)}, 4
        s_add_u32 {s(sT2)}, {s(sT2)}, {s(sT1)}
        s_lshl_b32 {s(sT3)}, {s(sT2)}, 7
        v_add_u32 {v(T)}, {s(sT3)}, {v(T)}
        s_lshl_b32 {s(sT2)}, {s(sT2)}, 2
        s_add_u32 {s(sT2)}, {s(sT2)}, {L_MEAN}
        v_mov_b32 {v(T + 1)}, {s(sT2)}
        """)
        loop = A.newlabel('LY')
        self.spin_start()
        A.label(loop)
        A(f"""
        buffer_load_dwordx4 {v(R, 4)}, {v(vL16)}, {s(sWS, 4)}, {s(sT0)} offen sc1
        v_mov_b32 {v(R + 4)}, 0
        v_mov_b32 {v(R + 6)}, 0
        s_waitcnt vmcnt(0)
        v_max3_u32 {v(R + 5)}, {v(R)}, {v(R + 1)}, {v(R + 2)}
        v_max_u32 {v(R + 5)}, {v(R + 5)}, {v(R + 3)}
        v_cmp_eq_u32 vcc, -1, {v(R + 5)}
        """)
        self.spin_check(loop, 8)
        self.stamp()
        A(f"ds_write_b128 {v(T)}, {v(R, 4)} offset:{XIMG}")
        for r in range(4):
            A(f"v_dot2c_f32_bf16 {v(R + 4)}, {v(R + r)}, {v(vONE)}")
            A(f"v_dot2c_f32_bf16 {v(R + 6)}, {v(R + r)}, {v(R + r)}")
        self.allreduce_rows([R + 4, R + 6], [T + 2, T + 3], 'v_add_f32')
        self.ln_stats(R + 4, T + 4, T + 5, None, None)
        A(f"ds_write2_b32 {v(T + 1)}, {v(T + 4)}, {v(T + 5)} offset0:0 offset1:80")
        A.label(skip)
        A("s_waitcnt lgkmcnt(0)")
        A("s_barrier")

    def finish_stamps(self):
        if not self.o.stamps:
            return
        A = self.A
        A("s_waitcnt vmcnt(0)")
        self.stamp()
        A(f"""
        s_lshl_b32 {s(sT0)}, s2, 2
        s_add_u32 {s(sT0)}, {s(sT0)}, {s(sWAVE)}
        s_lshl_b32 {s(sT0)}, {s(sT0)}, 8
        s_add_u32 {s(sT0)}, {s(sT0)}, {STAMP_BASE}
        v_lshlrev_b32 v253, 2, {v(vL)}
        s_mov_b32 exec_hi, 0
        buffer_store_dword v254, v253, {s(sWS, 4)}, {s(sT0)} offen
        buffer_store_dword {v(vSTAMP)}, v253, {s(sWS, 4)}, {s(sT0)} offen offset:128
        s_mov_b64 exec, -1
        """)

    def build(self):
        A = self.A
        self.prologue()
        self.qkv1()
        self.stamp()
        self.side_finish()
        A.label('L_ATT')
        self.attention()
        self.stamp()
        self.oproj()
        self.router()
        self.stamp()
        lg1, lg2, ll1, ln1, lq = [A.newlabel('LM') for _ in range(5)]
        A(f"s_cmp_lg_u32 {s(sLAYER)}, 0")
        A(f"s_cbranch_scc1 {ll1}")
        A(f"s_cmp_lt_i32 {s(sGIDX)}, 0")
        A(f"s_cbranch_scc1 {lg1}")
        self.ffn_wload()
        A.label(lg1)
        self.ximage()
        A(f"s_cmp_lt_i32 {s(sGIDX)}, 0")
        A(f"s_cbranch_scc1 {lg2}")
        self.ffn_wtrans()
        A.label(ll1)
        A(f"s_cmp_lt_i32 {s(sGIDX)}, 0")
        A(f"s_cbranch_scc1 {lg2}")
        self.stamp()
        self.top2()
        self.stamp()
        self.ffn()
        self.stamp()
        A.label(lg2)
        A(f"s_cmp_lg_u32 {s(sLAYER)}, 0")
        A(f"s_cbranch_scc1 {ln1}")
        A("s_waitcnt vmcnt(0) lgkmcnt(0)")
        A("s_barrier")
        self.stamp()
        A(f"s_mov_b32 {s(sMASK)}, 31")
        A(f"s_mov_b32 {s(sPASS)}, 0")
        A.label('L_QKV')
        A(f"s_ff1_i32_b32 {s(sT5)}, {s(sMASK)}")
        A(f"s_bitset0_b32 {s(sMASK)}, {s(sT5)}")
        self.qkv_block()
        A(f"s_cmp_lg_u32 {s(sMASK)}, 0")
        A("s_cbranch_scc1 L_QKV")
        self.stamp()
        A(f"s_cmp_lg_u32 {s(sPASS)}, 0")
        A("s_cbranch_scc1 L_NEXT")
        A.label(ln1)
        A(f"s_cmp_ge_i32 {s(sGIDX)}, 0")
        A(f"s_cbranch_scc1 {lq}")
        self.top2()
        A.label(lq)
        self.stamp()
        self.owner()
        A(f"s_cmp_lg_u32 {s(sLAYER)}, 0")
        A("s_cbranch_scc1 L_DONE")
        self.fixup()
        A(f"s_mov_b32 {s(sPASS)}, 1")
        A("s_branch L_QKV")
        A.label('L_NEXT')
        A(f"s_mov_b32 {s(sLAYER)}, 1")
        if self.o.stamps:
            A(f"v_mov_b32 v254, {v(vSTAMP)}")
            A(f"v_mov_b32 {v(vSTAMP)}, 0")
        A("s_branch L_ATT")
        A.label('L_DONE')
        A(f"""
        s_or_b32 {s(sT0)}, s2, {s(sWAVE)}
        s_cmp_lg_u32 {s(sT0)}, 0
        s_cbranch_scc1 L_FIN
        s_add_u32 {s(sT0)}, {s(sE0)}, 1
        v_mov_b32 {v(vTR)}, {s(sT0)}
        s_mov_b64 exec, 1
        buffer_store_dword {v(vTR)}, off, {s(sWS, 4)}, 0 offset:{EPOCH_OFF} sc1
        s_mov_b64 exec, -1
        """)
        A.label('L_FIN')
        self.finish_stamps()
        A.label('L_END')
        A("s_endpgm")
        if 'd' in self.o.exp:
            A.lines = [x for x in A.lines if not x.endswith(' lds')]
        if 'M' in self.o.exp:
            A.lines = [x for x in A.lines if not x.startswith('v_mfma_f32_16x16x32')]
        if 'b' in self.o.exp:
            A.lines = [x for x in A.lines if not x.startswith('s_barrier')]
        body = A.finish(verbose=self.o.verbose)
        ref = open('cdna_kernels/' + NAME + '.s.ref').read().split('\n')
        hdr = [ln for ln in ref if ln.startswith(';') and '@launch' not in ln]
        out = '\n'.join(hdr) + '\n'
        out += f"; @launch grid=(256,1,1) block=(256,1,1) lds={LDS_BYTES}\n"
        out += f""".amdgcn_target "amdgcn-amd-amdhsa--gfx950"
.text
.globl {NAME}_kernel
.p2align 8
.type {NAME}_kernel,@function
{NAME}_kernel:
{body}.section .rodata,"a"
.p2align 6
.amdhsa_kernel {NAME}_kernel
  .amdhsa_next_free_vgpr 512
  .amdhsa_next_free_sgpr 102
  .amdhsa_accum_offset 256
  .amdhsa_group_segment_fixed_size 0
  .amdhsa_kernarg_size 88
  .amdhsa_user_sgpr_count 2
  .amdhsa_user_sgpr_kernarg_segment_ptr 1
  .amdhsa_system_sgpr_workgroup_id_x 1
.end_amdhsa_kernel
"""
        return out


if __name__ == '__main__':
    ap = argparse.ArgumentParser()
    ap.add_argument('-o', default='k.s')
    ap.add_argument('--stop', default='')
    ap.add_argument('--stamps', type=int, default=0)
    ap.add_argument('--slow', type=int, default=0)
    ap.add_argument('--rota', type=int, default=1)
    ap.add_argument('--rotb', type=int, default=0)
    ap.add_argument('--verbose', type=int, default=0)
    ap.add_argument('--exp', default='')
    ap.add_argument('--na', type=int, default=6)
    ap.add_argument('--gap', type=int, default=56)
    ap.add_argument('--burst', type=int, default=7)
    ap.add_argument('--npro', type=int, default=18)
    opt = ap.parse_args()
    open(opt.o, 'w').write(Gen(opt).build())
```

```python
import sys, argparse
from asmlib import Asm, v, a, s
from layout import *

NAME = 'interleave_layers__sliding_local_dilated__moe_arch_mod__prompt'

XIMG = 0
RING = 81920
WOB = RING + 12288
MISC = 159744
L_MEAN = MISC
L_RS = MISC + 320
L_FP = MISC + 640
L_PRIV = L_FP + 2048
LDS_BYTES = 163840
assert L_PRIV + 1024 <= LDS_BYTES


def phys(i):
    return ((i % 6 + 3) % 6) * 12288


sX0, sWQ, sWO, sWS, sOUT, sWG, sWU, sWD, sWR = 8, 12, 16, 20, 24, 28, 32, 36, 40
sWAVE, sM, sQ, sXX, sP, sB, sCID, sTAG, sROT, sFAST, sLAYER, sGIDX = range(44, 56)
sT0, sT1, sT2, sT3, sT4, sT5, sT6, sT7 = range(56, 64)
sDIAG, sM1, sM2, sM3 = 64, 66, 68, 70
sXOWN, sKX, sLX, sW3072, sKS = 72, 73, 74, 75, 76
sSPIN = 77
sSUMW = 78
sK1, sK2 = 79, 80
sEX = 82
sAFF = 84
sE0, sE1 = 86, 87
sC0, sC1, sC2, sC3 = 88, 89, 90, 91
sST = 92
sOB = 94
sPASS, sMASK = 95, 96
sD0, sD1, sHALO, sW1024 = 97, 98, 99, 100
sREC = 81
sLT2 = 6
sSLOT, sKK = 85, 101
sSTB = 5
GQ = 1
N256 = NG * 256
vL, vT, vG, vL16, vOX = 0, 1, 2, 3, 4
vXR = 5
vTRO = 9
vSQK, vSV = 13, 14
vCSQ, vCSK, vCSV = 16, 20, 24
vSW = 25
vMC = 26
vNAT = 28
vKEY = 29
vBC, vBP, vBF, vONE = 32, 36, 40, 44
vWRF = 48
vRES = 56
vX1P, vHP = 72, 80
vWD = 88
vQP, vKP, vVP, vCQ = 120, 128, 138, 148
vTR = 152
vSTAMP = 151 + 104

NEG = 0xf149f2ca
LOG2E_Q = 0.25 * 1.4426950408889634


def f2u(x):
    import struct
    return struct.unpack('<I', struct.pack('<f', x))[0]


class Gen:
    def __init__(self, opt):
        self.o = opt
        self.A = Asm()
        self.nstamp = 0

    def stamp(self):
        if not self.o.stamps:
            return
        A = self.A
        A(f"s_memtime {s(sST, 2)}")
        A("s_waitcnt lgkmcnt(0)")
        A(f"v_writelane_b32 {v(vSTAMP)}, {s(sST)}, {self.nstamp}")
        self.nstamp += 1

    def srd(self, base, nbytes):
        self.A(f"s_mov_b32 {s(base + 2)}, {nbytes}")
        self.A(f"s_mov_b32 {s(base + 3)}, 0x20000")

    def st(self, op, data, voff, soff, extra=''):
        A = self.A
        l1, l2 = A.newlabel('LS'), A.newlabel('LS')
        A(f"s_cmp_eq_u32 {s(sFAST)}, 0")
        A(f"s_cbranch_scc1 {l1}")
        return l1, l2

    def dual(self, lines):
        A = self.A
        l1, l2 = A.newlabel('LS'), A.newlabel('LS')
        A(f"s_cmp_eq_u32 {s(sFAST)}, 0")
        A(f"s_cbranch_scc1 {l1}")
        for ln in lines:
            A(ln)
        A(f"s_branch {l2}")
        A.label(l1)
        for ln in lines:
            A(ln + (' sc1' if ln.startswith('buffer_store') else ''))
        A.label(l2)

    def spin_start(self):
        self.A(f"s_mov_b32 {s(sSPIN)}, 0x40000")

    def spin_check(self, loop, code):
        A = self.A
        done = A.newlabel('LD')
        A(f"s_cbranch_vccz {done}")
        A(f"s_sub_u32 {s(sSPIN)}, {s(sSPIN)}, 1")
        A(f"s_cbranch_scc0 {loop}")
        A.label(done)

    def prologue(self):
        A = self.A
        A(f"s_cmp_ge_u32 s2, 256")
        A("s_cbranch_scc1 L_END")
        for reg, off in ((sX0, 0), (sWQ, 8), (sWS, 80), (sWO, 16), (sWR, 32), (sWG, 40), (sWU, 48), (sWD, 56), (sOUT, 64)):
            A(f"s_load_dwordx2 {s(reg, 2)}, s[0:1], {off}")
        if self.o.stamps:
            A(f"v_mov_b32 {v(vSTAMP)}, 0")
        A(f"v_lshrrev_b32 v5, 6, v0")
        A(f"v_and_b32 {v(vL)}, 63, v0")
        A(f"v_readfirstlane_b32 {s(sWAVE)}, v5")
        self.srd(sX0, 2097152)
        self.srd(sWQ, 512 * 3072)
        self.srd(sWS, WS_USED)
        self.srd(sWO, 512 * 1024)
        self.srd(sWR, 1024)
        self.srd(sWG, 512 * 3584)
        self.srd(sWU, 512 * 3584)
        self.srd(sWD, 1792 * 1024)
        self.srd(sOUT, 2097152)
        A(f"""
        s_and_b32 {s(sXX)}, s2, 7
        s_lshr_b32 {s(sT0)}, s2, 3
        s_lshr_b32 {s(sQ)}, {s(sT0)}, 3
        s_and_b32 {s(sM)}, {s(sT0)}, 7
        s_and_b32 {s(sP)}, {s(sXX)}, 1
        s_lshr_b32 {s(sT1)}, {s(sXX)}, 1
        s_lshl_b32 {s(sT1)}, {s(sT1)}, 2
        s_add_u32 {s(sB)}, {s(sT1)}, {s(sQ)}
        s_lshl_b32 {s(sT1)}, {s(sP)}, 4
        s_add_u32 {s(sCID)}, {s(sT1)}, {s(sB)}
        s_mul_i32 {s(sROT)}, {s(sXX)}, {self.o.rota}
        s_mul_i32 {s(sT1)}, {s(sQ)}, {self.o.rotb}
        s_add_u32 {s(sROT)}, {s(sROT)}, {s(sT1)}
        s_and_b32 {s(sROT)}, {s(sROT)}, 7
        s_mov_b32 {s(sLAYER)}, 0
        """)
        A(f"""
        v_and_b32 {v(vT)}, 15, {v(vL)}
        v_lshrrev_b32 {v(vG)}, 4, {v(vL)}
        v_lshlrev_b32 {v(vL16)}, 4, {v(vL)}
        v_lshrrev_b32 v5, 3, {v(vL)}
        v_and_b32 v6, 7, {v(vL)}
        v_and_b32 v7, 6, v5
        v_xor_b32 v7, v6, v7
        v_lshlrev_b32 v7, 4, v7
        v_lshl_add_u32 {v(vOX)}, v5, 11, v7
        """)
        A(f"""
        s_and_b32 {s(sT2)}, {s(sWAVE)}, 1
        s_lshl_b32 {s(sT2)}, {s(sT2)}, 2
        v_and_b32 v7, 2, v5
        v_or_b32 v7, {s(sT2)}, v7
        v_xor_b32 v7, v6, v7
        v_lshlrev_b32 v7, 4, v7
        s_lshl_b32 {s(sT3)}, {s(sM)}, 7
        v_add_u32 v7, {s(sT3)}, v7
        s_lshl_b32 {s(sT4)}, {s(sWAVE)}, 3
        v_add_u32 v5, {s(sT4)}, v5
        v_mul_u32_u24 v30, 3072, v5
        v_add_u32 v30, v30, v7
        v_lshl_add_u32 v31, v5, 10, v7
        """)
        if 's' in self.o.exp:
            A(f"v_lshlrev_b32 v7, 4, v6")
            A(f"v_lshrrev_b32 v8, 3, {v(vL)}")
            A(f"v_lshl_add_u32 {v(vOX)}, v8, 11, v7")
            A(f"v_add_u32 v7, {s(sT3)}, v7")
            A(f"v_mul_u32_u24 v30, 3072, v5")
            A(f"v_add_u32 v30, v30, v7")
            A(f"v_lshl_add_u32 v31, v5, 10, v7")
        A(f"""
        s_lshl_b32 {s(sT0)}, {s(sB)}, 7
        s_lshl_b32 {s(sT1)}, {s(sWAVE)}, 5
        s_add_u32 {s(sT1)}, {s(sT1)}, {s(sT0)}
        s_add_u32 {s(sT1)}, {s(sT1)}, {s(sP)}
        s_lshl_b32 {s(sXOWN)}, {s(sT1)}, 10
        s_add_u32 {s(sT1)}, {s(sWAVE)}, 1
        s_lshl_b32 {s(sLX)}, {s(sT1)}, 11
        s_mul_i32 {s(sW3072)}, {s(sWAVE)}, 3072
        s_sub_u32 {s(sT0)}, {s(sT0)}, 16
        s_max_i32 {s(sT0)}, {s(sT0)}, 0
        s_add_u32 {s(sT0)}, {s(sT0)}, {s(sP)}
        s_lshl_b32 {s(sHALO)}, {s(sT0)}, 10
        s_lshl_b32 {s(sKX)}, {s(sROT)}, 7
        s_lshl_b32 {s(sKS)}, {s(sROT)}, 1
        s_lshl_b32 {s(sW1024)}, {s(sWAVE)}, 10
        """)
        A("s_waitcnt lgkmcnt(0)")
        if self.o.dbg:
            A(f"s_memrealtime {s(sST, 2)}")
            A("s_waitcnt lgkmcnt(0)")
            A(f"s_mov_b32 s3, {s(sST)}")
        self.stamp()
        A(f"s_load_dwordx2 {s(sE0, 2)}, {s(sWS, 2)}, {EPOCH_OFF}")

    def dma_halo(self, srd, base_add, sc):
        out = []
        for j in range(2):
            L = [f"s_lshl_b32 {s(sD0)}, {s(sWAVE)}, 1",
                 f"s_add_u32 {s(sD0)}, {s(sD0)}, {j}",
                 f"s_mul_i32 {s(sD1)}, {s(sD0)}, 10240",
                 f"s_add_u32 m0, {s(sD1)}, {XIMG + 1024}",
                 f"s_add_u32 {s(sD0)}, {s(sD0)}, {s(sROT)}",
                 f"s_and_b32 {s(sD0)}, {s(sD0)}, 7",
                 f"s_lshl_b32 {s(sD0)}, {s(sD0)}, 7",
                 f"s_add_u32 {s(sD0)}, {s(sD0)}, {s(sHALO)}"]
            if base_add:
                L.append(f"s_add_u32 {s(sD0)}, {s(sD0)}, {base_add}")
            L.append(f"buffer_load_dwordx4 {v(vOX)}, {s(srd, 4)}, {s(sD0)} offen{sc} lds")
            out.append(('H', L))
        return out

    def dma_x(self, P, srd, sc):
        return [(f'X{P}', [f"s_add_u32 m0, {s(sLX)}, {XIMG + P * 10240}",
                           f"s_add_u32 {s(sD0)}, {s(sXOWN)}, {s(sKX)}",
                           f"buffer_load_dwordx4 {v(vOX)}, {s(srd, 4)}, {s(sD0)} offen{sc} lds",
                           f"s_add_u32 {s(sKX)}, {s(sKX)}, 128"]),
                (f'X{P}', [f"s_add_u32 m0, {s(sLX)}, {XIMG + P * 10240 + 1024}",
                           f"s_add_u32 {s(sD0)}, {s(sD0)}, 16384",
                           f"buffer_load_dwordx4 {v(vOX)}, {s(srd, 4)}, {s(sD0)} offen{sc} lds",
                           f"s_and_b32 {s(sKX)}, {s(sKX)}, 1023"])]

    def dma_w(self, i):
        return [(f'W{i}', [f"s_add_u32 m0, {s(sW3072)}, {RING + phys(i)}",
                           f"s_mul_i32 {s(sD0)}, {s(sKS)}, 98304",
                           f"buffer_load_dwordx4 v30, {s(sWQ, 4)}, {s(sD0)} offen lds",
                           f"s_add_u32 {s(sKS)}, {s(sKS)}, 1"]),
                (f'W{i}', [f"buffer_load_dwordx4 v30, {s(sWQ, 4)}, {s(sD0)} offen offset:1024 lds",
                           f"s_and_b32 {s(sKS)}, {s(sKS)}, 15"]),
                (f'W{i}', [f"buffer_load_dwordx4 v30, {s(sWQ, 4)}, {s(sD0)} offen offset:2048 lds"])]

    def dma_wo(self, j):
        return [('O', [f"s_add_u32 m0, {s(sW1024)}, {WOB + j * 4096}",
                       f"s_mov_b32 {s(sD0)}, {j * 32768}",
                       f"buffer_load_dwordx4 v31, {s(sWO, 4)}, {s(sD0)} offen lds"])]

    @staticmethod
    def cost(ln):
        op = ln.split()[0]
        if op.startswith('v_mfma'):
            return 16
        if op.startswith(('v_exp', 'v_rcp', 'v_rsq', 'ds_read_b128', 'ds_write_b128')):
            return 8
        return 4

    def weave(self, filler, queue, seq, allowed, gap, force=0):
        A = self.A
        masked = False
        for ln in filler:
            if (queue and not masked and self.since >= gap and allowed(queue[0])
                    and not ln.startswith(('s_cselect', 's_cbranch', 's_addc'))):
                tag, L, _ = queue.pop(0)
                for x in L:
                    A(x)
                seq.append(tag)
                self.since = 4 * (len(L) - 1)
            A(ln)
            if ln.startswith('s_mov_b64 exec'):
                masked = not ln.endswith('-1')
            if ln.startswith('buffer_'):
                seq.append('E')
            self.since += self.cost(ln)

    def capture(self, fn, *args):
        old = self.A.lines
        self.A.lines = []
        fn(*args)
        got = self.A.lines
        self.A.lines = old
        return got

    def consts(self):
        A = self.A
        A(f"""
        v_lshrrev_b32 v16, 3, {v(vT)}
        v_and_b32 v17, 7, {v(vT)}
        v_lshlrev_b32 v17, 7, v17
        v_lshl_add_u32 v16, v16, 10, v17
        v_and_b32 v17, 6, {v(vT)}
        v_xor_b32 v17, {v(vG)}, v17
        v_lshl_add_u32 {v(vXR)}, v17, 4, v16
        v_xor_b32 {v(vXR + 1)}, 64, {v(vXR)}
        v_add_u32 {v(vXR + 2)}, 40960, {v(vXR)}
        v_add_u32 {v(vXR + 3)}, 40960, {v(vXR + 1)}
        """)
        A(f"""
        v_bfe_u32 v16, {v(vL)}, 2, 2
        v_and_b32 v17, 2, v16
        v_and_b32 v18, 1, {v(vG)}
        v_lshl_or_b32 v17, v18, 2, v17
        v_bfe_u32 v18, {v(vL)}, 1, 1
        v_xor_b32 v17, v17, v18
        v_lshlrev_b32 v17, 4, v17
        v_lshl_add_u32 v17, v16, 7, v17
        v_and_b32 v18, 1, {v(vL)}
        v_lshl_add_u32 v17, v18, 3, v17
        v_lshl_add_u32 {v(vTRO)}, {v(vG)}, 10, v17
        v_add_u32 {v(vTRO)}, {WOB}, {v(vTRO)}
        v_xor_b32 {v(vTRO + 1)}, 32, {v(vTRO)}
        v_xor_b32 {v(vTRO + 2)}, 64, {v(vTRO)}
        v_xor_b32 {v(vTRO + 3)}, 96, {v(vTRO)}
        s_lshl_b32 {s(sT0)}, {s(sWAVE)}, 5
        v_xor_b32 v17, {s(sT0)}, v17
        v_mul_u32_u24 v18, 3072, {v(vG)}
        v_add3_u32 v15, v17, v18, 0
        v_add_u32 v15, {RING}, v15
        """)
        A(f"""
        v_lshlrev_b32 {v(vSQK)}, 2, {v(vT)}
        v_add_u32 {v(vSQK)}, {L_MEAN}, {v(vSQK)}
        v_lshlrev_b32 {v(vSV)}, 4, {v(vG)}
        v_add_u32 {v(vSV)}, {L_MEAN}, {v(vSV)}
        """)
        A(f"""
        v_mov_b32 v20, 0x3f803f80
        v_cmp_gt_u32 vcc, 8, {v(vL)}
        s_mul_i32 {s(sT0)}, {s(sWAVE)}, 20480
        v_add_u32 v16, {s(sT0)}, {v(vL16)}
        v_cndmask_b32 v20, 0, v20, vcc
        v_mov_b32 v21, v20
        v_mov_b32 v22, v20
        v_mov_b32 v23, v20
        ds_write_b128 v16, v[20:23] offset:{XIMG}
        ds_write_b128 v16, v[20:23] offset:{XIMG + 10240}
        """)
        A(f"v_lshlrev_b32 v16, 2, {v(vG)}")
        A(f"v_sub_u32 v16, {v(vT)}, v16")
        A(f"v_mov_b32 v17, {hex(NEG)}")
        A(f"s_cmp_eq_u32 {s(sB)}, 0")
        A(f"s_cselect_b64 {s(sEX, 2)}, -1, 0")
        for r in range(4):
            A(f"v_subrev_u32 v18, {r}, v16")
            A(f"v_cmp_lt_u32 vcc, 7, v18")
            A(f"v_cndmask_b32 {v(vBC + r)}, 0, v17, vcc")
            A(f"v_cmp_lt_i32 vcc, -9, v18")
            A(f"v_cndmask_b32 {v(vBP + r)}, 0, v17, vcc")
            A(f"v_cndmask_b32 {v(vBF + r)}, {v(vBP + r)}, v17, {s(sEX, 2)}")
            A(f"v_mov_b32 {v(vONE + r)}, 0x3f803f80")
            A(f"v_cmp_le_i32 vcc, 0, v18")
            if r % 2 == 0:
                A(f"v_mov_b32 v19, 0xffff")
                A(f"v_cndmask_b32 {v(vMC + r // 2)}, 0, v19, vcc")
            else:
                A(f"v_mov_b32 v19, 0xffff0000")
                A(f"v_cndmask_b32 v19, 0, v19, vcc")
                A(f"v_or_b32 {v(vMC + r // 2)}, {v(vMC + r // 2)}, v19")
        A(f"""
        v_lshrrev_b32 v16, 2, {v(vT)}
        v_cmp_eq_u32 {s(sDIAG, 2)}, v16, {v(vG)}
        v_and_b32 v16, 3, {v(vT)}
        v_cmp_eq_u32 {s(sM1, 2)}, 1, v16
        v_cmp_eq_u32 {s(sM2, 2)}, 2, v16
        v_cmp_eq_u32 {s(sM3, 2)}, 3, v16
        """)

    def diag(self, dst, G):
        A = self.A
        A(f"v_cndmask_b32 {v(dst)}, {v(G)}, {v(G + 1)}, {s(sM1, 2)}")
        A(f"v_cndmask_b32 {v(dst)}, {v(dst)}, {v(G + 2)}, {s(sM2, 2)}")
        A(f"v_cndmask_b32 {v(dst)}, {v(dst)}, {v(G + 3)}, {s(sM3, 2)}")

    def bcast_row0(self, r, tmp):
        A = self.A
        A(f"v_mov_b32 {v(tmp)}, {v(r)}")
        A(f"v_permlane16_swap_b32 {v(r)}, {v(tmp)}")
        A(f"v_mov_b32 {v(tmp)}, {v(r)}")
        A(f"v_permlane32_swap_b32 {v(r)}, {v(tmp)}")

    def qkv1(self):
        A = self.A
        XF = 72
        ACC = vTR
        aK = lambda tb: ACC + tb * 4
        aV = lambda tb: ACC + 20 + tb * 4
        aQ = lambda tb: ACC + 40 + tb * 4
        aG, aS, aG0 = ACC + 60, ACC + 64, ACC + 68
        OWN = vTR + 72
        seq = []
        queue = []
        for op in self.dma_halo(sX0, 0, ''):
            queue.append(op + (-1,))
        for i in range(16):
            if i % 2 == 0:
                queue += [op + (-1,) for op in self.dma_x(i // 2, sX0, '')]
            queue += [op + (i - 5 if i >= 6 else -1,) for op in self.dma_w(i)]
        queue += [op + (-1,) for op in self.dma_wo(15)]
        for j in range(15):
            queue += [op + (11 + j // 3,) for op in self.dma_wo(j)]
        GAP = self.o.gap
        for _ in range(self.o.burst):
            tag, L, _m = queue.pop(0)
            for x in L:
                A(x)
            seq.append(tag)
        self.since = 0
        fill = self.capture(self.consts)
        fill += [f"v_add_u32 {v(OWN + j)}, {s(sLX)}, {v(vXR + j)}" for j in range(4)]
        self.weave(fill, queue, seq, lambda op: op[2] < 0, GAP)
        while len([t for t in seq if t != 'E']) < self.o.npro:
            tag, L, _m = queue.pop(0)
            assert _m < 0
            for x in L:
                A(x)
            seq.append(tag)
        self.early()

        def mf(i):
            xb = XF + (i & 1) * 24
            x = lambda tb: v(xb + tb * 4, 4)
            W = lambda part: a((part * 16 + i) * 4, 4)
            c = (lambda r: '0') if i == 0 else (lambda r: v(r, 4))
            L = []
            for tb in range(5):
                L.append(f"v_mfma_f32_16x16x32_bf16 {v(aK(tb), 4)}, {W(1)}, {x(tb)}, {c(aK(tb))}")
                L.append(f"v_mfma_f32_16x16x32_bf16 {v(aV(tb), 4)}, {x(tb)}, {W(2)}, {c(aV(tb))}")
                L.append(f"v_mfma_f32_16x16x32_bf16 {v(aQ(tb), 4)}, {W(0)}, {x(tb)}, {c(aQ(tb))}")
            L.append(f"v_mfma_f32_16x16x32_bf16 {v(aG, 4)}, {x(5)}, {x(5)}, {c(aG)}")
            L.append(f"v_mfma_f32_16x16x32_bf16 {v(aS, 4)}, {v(vONE, 4)}, {x(5)}, {c(aS)}")
            L.append(f"v_mfma_f32_16x16x32_bf16 {v(aG0, 4)}, {x(0)}, {x(0)}, {c(aG0)}")
            return L

        for i in range(16):
            while seq.count(f'W{i}') < 3:
                tag, L, _m = queue.pop(0)
                assert _m < i
                for x in L:
                    A(x)
                seq.append(tag)
            last = max(k for k, t in enumerate(seq) if t in (f'W{i}', f'X{i >> 1}', 'H'))
            n = len(seq) - 1 - last
            A(f"s_waitcnt vmcnt({n})" + (" lgkmcnt(0)" if i == 0 else ""))
            A("s_barrier")
            if i == 0 or 'S' in self.o.exp:
                self.stamp()
            kp, par = i >> 1, i & 1
            xb = XF + par * 24
            base = vXR + (2 if kp >= 4 else 0) + par
            koff = (kp & 3) * 10240
            def tr(part):
                ar = (part * 16 + i) * 4
                return [f"ds_read_b64_tr_b16 {a(ar, 2)}, v15 offset:{phys(i) + part * 1024}",
                        f"ds_read_b64_tr_b16 {a(ar + 2, 2)}, v15 offset:{phys(i) + part * 1024 + 512}"]
            xr = lambda tb: f"ds_read_b128 {v(xb + tb * 4, 4)}, {v(base)} offset:{XIMG + koff + tb * 2048}"
            own = f"ds_read_b128 {v(xb + 20, 4)}, {v(OWN + (2 if kp >= 4 else 0) + par)} offset:{XIMG + koff}"
            reads = tr(1) + [xr(0)] + tr(2) + tr(0) + [xr(1), xr(2), xr(3), xr(4), own]
            NA = self.o.na
            mb = mf(i - 1)[NA:] if i > 0 else []
            fill = []
            k = 0
            for n_, r in enumerate(reads):
                if k < len(mb):
                    fill.append(mb[k])
                    k += 1
                fill.append(r)
            fill += mb[k:]
            ma = mf(i)[:NA]
            for n_, m_ in enumerate(ma):
                if n_ % 3 == 0:
                    fill.append(f"s_waitcnt lgkmcnt({5 - n_ // 3})")
                fill.append(m_)
            fill.append("s_waitcnt lgkmcnt(0)")
            if 'm' in self.o.exp:
                fill = [x if not x.startswith('v_mfma') else 's_nop 3' for x in fill]
            if 't' in self.o.exp:
                fill = [x for x in fill if not x.startswith('ds_read_b64_tr')]
            if 'r' in self.o.exp:
                fill = [x for x in fill if not x.startswith('ds_read_b128')]
            self.weave(fill, queue, seq, lambda op: op[2] <= i, GAP)
        self.dmaq, self.dmaseq = queue, seq
        self.weave(mf(15)[self.o.na:], queue, seq, lambda op: True, GAP)
        while queue:
            tag, L, _m = queue.pop(0)
            for x in L:
                A(x)
        self.stamp()
        self.side_issue()
        T = vTR + 76
        A(f"""
        s_sub_u32 {s(sT0)}, {s(sM)}, {s(sROT)}
        s_and_b32 {s(sT0)}, {s(sT0)}, 7
        s_mul_i32 {s(sT0)}, {s(sT0)}, 10240
        s_add_u32 {s(sT0)}, {s(sT0)}, {s(sLX)}
        v_lshrrev_b32 {v(T)}, 3, {v(vT)}
        v_and_b32 {v(T + 1)}, 7, {v(vT)}
        v_lshlrev_b32 {v(T + 1)}, 7, {v(T + 1)}
        v_lshl_add_u32 {v(T)}, {v(T)}, 10, {v(T + 1)}
        v_and_b32 {v(T + 1)}, 6, {v(vT)}
        v_lshrrev_b32 {v(T + 2)}, 1, {v(vG)}
        v_xor_b32 {v(T + 1)}, {v(T + 1)}, {v(T + 2)}
        v_lshl_add_u32 {v(T)}, {v(T + 1)}, 4, {v(T)}
        v_and_b32 {v(T + 1)}, 1, {v(vG)}
        v_lshl_add_u32 {v(T)}, {v(T + 1)}, 3, {v(T)}
        v_add_u32 {v(T)}, {s(sT0)}, {v(T)}
        """)
        for cb in range(4):
            if cb:
                A(f"v_xor_b32 {v(T + cb)}, {cb * 32}, {v(T)}")
        RX = vTR + 84
        for cb in range(4):
            A(f"ds_read_b64 {v(RX + 2 * cb, 2)}, {v(T + cb)} offset:{XIMG}")
        U = vTR + 92
        self.diag(U, aG)
        self.diag(U + 1, aG0)
        A(f"v_mov_b32 {v(U + 2)}, {v(aG0)}")
        A(f"v_mov_b32 {v(vCSV)}, {v(aV(0))}")
        self.bcast_row0(U + 2, U + 3)
        self.bcast_row0(vCSV, U + 4)
        for r in range(4):
            A(f"v_mov_b32_dpp {v(vCSQ + r)}, {v(aQ(0) + r)} row_newbcast:0 row_mask:0xf bank_mask:0xf")
            A(f"v_mov_b32_dpp {v(vCSK + r)}, {v(aK(0) + r)} row_newbcast:0 row_mask:0xf bank_mask:0xf")
        inv = hex(f2u(1.0 / 512))
        A(f"s_mov_b32 {s(sC0)}, {inv}")
        A(f"s_mov_b32 {s(sC1)}, {hex(f2u(1e-5))}")
        A(f"v_mul_f32 {v(U + 5)}, {s(sC0)}, {v(aS)}")
        A(f"v_mul_f32 {v(U + 6)}, {s(sC0)}, {v(U + 2)}")
        for k in range(2):
            A(f"v_mul_f32 {v(U + k)}, {s(sC0)}, {v(U + k)}")
        for k in range(2):
            A(f"v_fma_f32 {v(U + k)}, -{v(U + 5 + k)}, {v(U + 5 + k)}, {v(U + k)}")
        for k in range(2):
            A(f"v_max_f32 {v(U + k)}, 0, {v(U + k)}")
        for k in range(2):
            A(f"v_add_f32 {v(U + k)}, {s(sC1)}, {v(U + k)}")
        for k in range(2):
            A(f"v_rsq_f32 {v(U + k)}, {v(U + k)}")
        A(f"s_lshr_b32 {s(sT0)}, {s(sLX)}, 5")
        A(f"v_add_u32 {v(U + 7)}, {s(sT0)}, {v(vSQK)}")
        A(f"s_mov_b64 exec, {s(sDIAG, 2)}")
        A(f"ds_write2_b32 {v(U + 7)}, {v(U + 5)}, {v(U)} offset0:0 offset1:80")
        A(f"ds_write2_b32 {v(vSQK)}, {v(U + 6)}, {v(U + 1)} offset0:0 offset1:80")
        A(f"s_mov_b64 exec, -1")
        A("s_waitcnt lgkmcnt(0)")
        A("s_barrier")
        SQ = vTR + 72
        SV = 72
        for tb in range(5):
            A(f"ds_read2_b32 {v(SQ + 2 * tb, 2)}, {v(vSQK)} offset0:{tb * 16} offset1:{tb * 16 + 80}")
        for tb in range(5):
            A(f"ds_read_b128 {v(SV + 8 * tb, 4)}, {v(vSV)} offset:{tb * 64}")
            A(f"ds_read_b128 {v(SV + 8 * tb + 4, 4)}, {v(vSV)} offset:{tb * 64 + 320}")
        for cb in range(4):
            for h in range(2):
                A(f"v_lshlrev_b32 {v(vRES + cb * 4 + 2 * h)}, 16, {v(RX + 2 * cb + h)}")
                A(f"v_and_b32 {v(vRES + cb * 4 + 2 * h + 1)}, 0xffff0000, {v(RX + 2 * cb + h)}")
        A(f"s_mov_b32 {s(sC2)}, {hex(f2u(LOG2E_Q))}")
        A("s_waitcnt lgkmcnt(0)")
        for tb in range(5):
            self.epi_block(tb, aQ(tb), aK(tb), aV(tb), SQ + 2 * tb, SV + 8 * tb)

    def epi_lines(self, tb, aq, ak, av, sq, sv):
        L = []
        nm = "op_sel_hi:[1,0,1] neg_lo:[0,1,0] neg_hi:[0,1,0]"
        for h in range(2):
            L.append(f"v_pk_fma_f32 {v(ak + 2 * h, 2)}, {v(vCSK + 2 * h, 2)}, {v(sq, 2)}, {v(ak + 2 * h, 2)} {nm}")
        for h in range(2):
            L.append(f"v_pk_fma_f32 {v(av + 2 * h, 2)}, {v(sv + 2 * h, 2)}, {v(vCSV, 2)}, {v(av + 2 * h, 2)} {nm}")
        if tb:
            for h in range(2):
                L.append(f"v_pk_fma_f32 {v(aq + 2 * h, 2)}, {v(vCSQ + 2 * h, 2)}, {v(sq, 2)}, {v(aq + 2 * h, 2)} {nm}")
        for h in range(2):
            L.append(f"v_pk_mul_f32 {v(ak + 2 * h, 2)}, {v(ak + 2 * h, 2)}, {v(sq, 2)} op_sel:[0,1] op_sel_hi:[1,1]")
        for h in range(2):
            L.append(f"v_pk_mul_f32 {v(av + 2 * h, 2)}, {v(av + 2 * h, 2)}, {v(sv + 4 + 2 * h, 2)}")
        if tb:
            L.append(f"v_mul_f32 {v(vCQ + tb - 1)}, {s(sC2)}, {v(sq + 1)}")
            for h in range(2):
                L.append(f"v_cvt_pk_bf16_f32 {v(vQP + 2 * (tb - 1) + h)}, {v(aq + 2 * h)}, {v(aq + 2 * h + 1)}")
        for h in range(2):
            L.append(f"v_cvt_pk_bf16_f32 {v(vKP + 2 * tb + h)}, {v(ak + 2 * h)}, {v(ak + 2 * h + 1)}")
        for h in range(2):
            L.append(f"v_cvt_pk_bf16_f32 {v(vVP + 2 * tb + h)}, {v(av + 2 * h)}, {v(av + 2 * h + 1)}")
        return L

    def epi_block(self, *args):
        for ln in self.epi_lines(*args):
            self.A(ln)

    def early(self):
        A = self.A
        A("s_waitcnt lgkmcnt(0)")
        A(f"""
        s_mul_i32 {s(sT0)}, {s(sE0)}, 0x9e3779b1
        s_mul_i32 {s(sT1)}, {s(sE1)}, 0x85ebca77
        s_add_u32 {s(sTAG)}, {s(sT0)}, {s(sT1)}
        s_add_u32 {s(sTAG)}, {s(sTAG)}, 0x2545f491
        s_getreg_b32 {s(sT2)}, hwreg(HW_REG_XCC_ID, 0, 4)
        s_add_u32 {s(sFAST)}, {s(sTAG)}, {s(sT2)}
        """)
        skip = A.newlabel('LE')
        A(f"""
        s_cmp_lg_u32 {s(sWAVE)}, 0
        s_cbranch_scc1 {skip}
        v_mov_b32 v16, {s(sFAST)}
        s_lshl_b32 {s(sT0)}, {s(sCID)}, 3
        s_add_u32 {s(sT0)}, {s(sT0)}, {s(sM)}
        s_lshl_b32 {s(sT0)}, {s(sT0)}, 7
        s_add_u32 {s(sT0)}, {s(sT0)}, {XCC_BASE}
        s_mov_b64 exec, 1
        buffer_store_dword v16, off, {s(sWS, 4)}, {s(sT0)} sc1
        s_mov_b64 exec, -1
        """)
        A.label(skip)

    def side_issue(self):
        A = self.A
        P = 112
        T = vTR + 80
        for r in range(4):
            A(f"v_mov_b32 {v(P + r)}, -1")
        A(f"""
        s_lshl_b32 {s(sREC)}, {s(sCID)}, 2
        s_add_u32 {s(sREC)}, {s(sREC)}, {s(sWAVE)}
        s_mul_i32 {s(sGIDX)}, {s(sXX)}, 7
        s_add_u32 {s(sGIDX)}, {s(sGIDX)}, {s(sM)}
        s_sub_u32 {s(sGIDX)}, {s(sGIDX)}, 1
        s_cmp_eq_u32 {s(sM)}, 0
        s_cselect_b32 {s(sGIDX)}, -1, {s(sGIDX)}
        s_cmp_lg_u32 {s(sQ)}, {GQ}
        s_cselect_b32 {s(sGIDX)}, -1, {s(sGIDX)}
        v_cmp_gt_u32 {s(sLT2, 2)}, 2, {v(vT)}
        """)
        A(f"""
        v_lshlrev_b32 {v(T)}, 3, {v(vG)}
        s_lshl_b32 {s(sT0)}, {s(sM)}, 7
        """)
        for cb in range(4):
            A(f"buffer_load_dwordx2 {v(vWRF + 2 * cb, 2)}, {v(T)}, {s(sWR, 4)}, {s(sT0)} offen offset:{cb * 32}")
        A(f"buffer_load_dwordx4 {v(self.WRFULL, 4)}, {v(vL16)}, {s(sWR, 4)}, 0 offen")
        A(f"""
        s_cmp_eq_u32 {s(sWAVE)}, 3
        s_cselect_b32 {s(sT0)}, 15, 7
        s_cmp_eq_u32 {s(sB)}, 15
        s_cselect_b32 {s(sT0)}, 7, {s(sT0)}
        v_and_b32 v30, {s(sT0)}, {v(vL)}
        v_lshlrev_b32 v30, 7, v30
        s_lshl_b32 {s(sT0)}, {s(sCID)}, 10
        s_add_u32 {s(sT0)}, {s(sT0)}, {XCC_BASE}
        buffer_load_dword v15, v30, {s(sWS, 4)}, {s(sT0)} offen sc1
        """)
        A(f"""
        v_lshlrev_b32 {v(T)}, 18, {v(vG)}
        v_bfe_u32 {v(T + 1)}, {v(vL)}, 3, 1
        v_lshl_add_u32 {v(T)}, {v(T + 1)}, 10, {v(T)}
        v_and_b32 {v(T + 1)}, 7, {v(vL)}
        v_lshl_add_u32 {v(T)}, {v(T + 1)}, 4, {v(T)}
        s_lshl_b32 {s(sT0)}, {s(sREC)}, 11
        s_lshl_b32 {s(sT1)}, {s(sM)}, 7
        s_add_u32 {s(sT0)}, {s(sT0)}, {s(sT1)}
        s_add_u32 {s(sT0)}, {s(sT0)}, {CAND_BASE}
        s_mov_b32 exec_hi, 0
        buffer_store_dwordx4 {v(P, 4)}, {v(T)}, {s(sWS, 4)}, {s(sT0)} offen sc1
        s_mov_b64 exec, -1
        """)
        assert CAND_LAYER == 1 << 18
        skip = A.newlabel('LP')
        A(f"""
        s_cmp_lt_i32 {s(sGIDX)}, 0
        s_cbranch_scc1 {skip}
        v_lshrrev_b32 {v(T + 2)}, 1, {v(vG)}
        v_mul_u32_u24 {v(T + 2)}, {8 * N256}, {v(T + 2)}
        v_and_b32 {v(T + 3)}, 1, {v(vG)}
        v_mul_u32_u24 {v(T + 3)}, {N256}, {v(T + 3)}
        v_lshlrev_b32 {v(T + 1)}, 4, {v(vT)}
        v_add3_u32 {v(T + 2)}, {v(T + 2)}, {v(T + 3)}, {v(T + 1)}
        s_mul_i32 {s(sT0)}, {s(sWAVE)}, {2 * N256}
        s_lshl_b32 {s(sT1)}, {s(sGIDX)}, 8
        s_add_u32 {s(sT0)}, {s(sT0)}, {s(sT1)}
        s_add_u32 {s(sT0)}, {s(sT0)}, {PART_BASE}
        s_add_u32 {s(sT1)}, {s(sT0)}, {PART_LAYER}
        buffer_store_dwordx4 {v(P, 4)}, {v(T + 2)}, {s(sWS, 4)}, {s(sT0)} offen sc1
        buffer_store_dwordx4 {v(P, 4)}, {v(T + 2)}, {s(sWS, 4)}, {s(sT1)} offen sc1
        """)
        A.label(skip)
        skip = A.newlabel('LP')
        A(f"""
        s_cmp_lg_u32 s2, 0
        s_cbranch_scc1 {skip}
        s_add_u32 {s(sT0)}, {s(sW1024)}, {FIX_BASE}
        buffer_store_dwordx4 {v(P, 4)}, {v(vL16)}, {s(sWS, 4)}, {s(sT0)} offen sc1
        """)
        A.label(skip)

    WRFULL = 116

    def allreduce_rows(self, regs, tmps, op, dpp=True):
        A = self.A
        if dpp:
            for rot in (8, 4, 2, 1):
                for r in regs:
                    A(f"{op}_dpp {v(r)}, {v(r)}, {v(r)} row_ror:{rot} row_mask:0xf bank_mask:0xf")
        for sw in ('v_permlane32_swap_b32', 'v_permlane16_swap_b32'):
            for r, t in zip(regs, tmps):
                A(f"v_mov_b32 {v(t)}, {v(r)}")
            for r, t in zip(regs, tmps):
                A(f"{sw} {v(r)}, {v(t)}")
            for r, t in zip(regs, tmps):
                A(f"{op} {v(r)}, {v(r)}, {v(t)}")

    def side_finish(self):
        A = self.A
        T = vTR
        A("s_waitcnt vmcnt(0)")
        loop, ok = A.newlabel('LX'), A.newlabel('LX')
        self.spin_start()
        A(f"s_lshl_b32 {s(sT0)}, {s(sCID)}, 10")
        A(f"s_add_u32 {s(sT0)}, {s(sT0)}, {XCC_BASE}")
        A(f"s_branch {ok}")
        A.label(loop)
        A(f"buffer_load_dword v15, v30, {s(sWS, 4)}, {s(sT0)} offen sc1")
        A("s_waitcnt vmcnt(0)")
        A.label(ok)
        A(f"v_subrev_u32 {v(T)}, {s(sTAG)}, v15")
        A(f"v_cmp_le_u32 vcc, 16, {v(T)}")
        self.spin_check(loop, 1)
        A(f"""
        v_cmp_ne_u32 vcc, {s(sFAST)}, v15
        s_cmp_eq_u64 vcc, 0
        s_cselect_b32 {s(sFAST)}, 1, 0
        """)
        if self.o.slow:
            A(f"s_mov_b32 {s(sFAST)}, 0")
        W = self.WRFULL
        A(f"v_mov_b32 {v(vSW)}, 0")
        for r in range(4):
            A(f"v_dot2c_f32_bf16 {v(vSW)}, {v(W + r)}, {v(vONE)}")
        A(f"v_and_b32 {v(T)}, 3, {v(vT)}")
        A(f"v_cmp_eq_u32 vcc, 0, {v(T)}")
        for r in range(8):
            A(f"v_cndmask_b32 {v(vWRF + r)}, 0, {v(vWRF + r)}, {s(sM1, 2)}")
            A(f"v_cndmask_b32 {v(vWRF + r)}, {v(vWRF + r)}, {v(vONE)}, vcc")
        A(f"""
        v_and_b32 {v(T)}, 1, {v(vG)}
        v_lshrrev_b32 {v(T + 1)}, 1, {v(vG)}
        v_lshl_or_b32 {v(T)}, {v(T)}, 1, {v(T + 1)}
        v_lshlrev_b32 {v(T)}, 4, {v(T)}
        v_lshl_add_u32 {v(vNAT)}, {v(vT)}, 11, {v(T)}
        """)
        self.allreduce_rows([vSW], [T], 'v_add_f32')

    def attention(self):
        A = self.A
        SC = lambda qb: vTR + (qb - 1) * 8
        SP = lambda qb: vTR + (qb - 1) * 8 + 4
        MX = lambda qb: vTR + 32 + (qb - 1)
        TM = lambda qb: vTR + 36 + (qb - 1)
        PP = lambda qb: vTR + 40 + (qb - 1) * 6
        DN = lambda qb: vTR + 64 + (qb - 1) * 4
        OO = lambda qb: vTR + 80 + (qb - 1) * 4
        Q = range(1, 5)
        for qb in Q:
            q = v(vQP + 2 * (qb - 1), 2)
            A(f"v_mfma_f32_16x16x16_bf16 {v(SC(qb), 4)}, {v(vKP + 2 * qb, 2)}, {q}, {v(vBC, 4)}")
            A(f"v_mfma_f32_16x16x16_bf16 {v(SP(qb), 4)}, {v(vKP + 2 * (qb - 1), 2)}, {q}, {v(vBF if qb == 1 else vBP, 4)}")
        for qb in Q:
            for r in range(4):
                A(f"v_max_f32 {v(SC(qb) + r)}, {v(SC(qb) + r)}, {v(SP(qb) + r)}")
            A(f"v_max3_f32 {v(MX(qb))}, {v(SC(qb))}, {v(SC(qb) + 1)}, {v(SC(qb) + 2)}")
            A(f"v_max_f32 {v(MX(qb))}, {v(MX(qb))}, {v(SC(qb) + 3)}")
        for sw in ('v_permlane32_swap_b32', 'v_permlane16_swap_b32'):
            for qb in Q:
                A(f"v_mov_b32 {v(TM(qb))}, {v(MX(qb))}")
            for qb in Q:
                A(f"{sw} {v(MX(qb))}, {v(TM(qb))}")
            for qb in Q:
                A(f"v_max_f32 {v(MX(qb))}, {v(MX(qb))}, {v(TM(qb))}")
        for qb in Q:
            A(f"v_mul_f32 {v(MX(qb))}, {v(MX(qb))}, {v(vCQ + qb - 1)}")
        for qb in Q:
            for r in range(4):
                A(f"v_fma_f32 {v(SC(qb) + r)}, {v(SC(qb) + r)}, {v(vCQ + qb - 1)}, -{v(MX(qb))}")
            for r in range(4):
                A(f"v_exp_f32 {v(SC(qb) + r)}, {v(SC(qb) + r)}")
        for qb in Q:
            for h in range(2):
                A(f"v_cvt_pk_bf16_f32 {v(PP(qb) + h)}, {v(SC(qb) + 2 * h)}, {v(SC(qb) + 2 * h + 1)}")
            for h in range(2):
                A(f"v_and_b32 {v(PP(qb) + 2 + h)}, {v(PP(qb) + h)}, {v(vMC + h)}")
            for h in range(2):
                A(f"v_xor_b32 {v(PP(qb) + 4 + h)}, {v(PP(qb) + h)}, {v(PP(qb) + 2 + h)}")
            A(f"v_mfma_f32_16x16x16_bf16 {v(DN(qb), 4)}, {v(vONE, 2)}, {v(PP(qb), 2)}, 0")
            A(f"v_mfma_f32_16x16x16_bf16 {v(OO(qb), 4)}, {v(vVP + 2 * qb, 2)}, {v(PP(qb) + 2, 2)}, 0")
            A(f"v_mfma_f32_16x16x16_bf16 {v(OO(qb), 4)}, {v(vVP + 2 * (qb - 1), 2)}, {v(PP(qb) + 4, 2)}, {v(OO(qb), 4)}")
        VO = vTR + 96
        A(f"""
        v_and_b32 {v(VO)}, 1, {v(vG)}
        v_lshlrev_b32 {v(VO)}, 14, {v(VO)}
        v_lshrrev_b32 {v(VO + 1)}, 1, {v(vG)}
        v_lshl_add_u32 {v(VO)}, {v(VO + 1)}, 8, {v(VO)}
        v_lshl_add_u32 {v(VO)}, {v(vT)}, 4, {v(VO)}
        s_lshl_b32 {s(sOB)}, {s(sCID)}, 16
        s_add_u32 {s(sOB)}, {s(sOB)}, {O_BASE}
        s_lshl_b32 {s(sT0)}, {s(sM)}, 2
        s_add_u32 {s(sT0)}, {s(sT0)}, {s(sWAVE)}
        s_lshl_b32 {s(sT1)}, {s(sT0)}, 9
        s_add_u32 {s(sT1)}, {s(sT1)}, {s(sOB)}
        s_add_u32 {s(sT2)}, {s(sT1)}, 32768
        """)
        for qb in Q:
            A(f"v_rcp_f32 {v(DN(qb))}, {v(DN(qb))}")
        OP = lambda pair: vTR + pair * 4
        for qb in Q:
            for h in range(2):
                A(f"v_pk_mul_f32 {v(OO(qb) + 2 * h, 2)}, {v(OO(qb) + 2 * h, 2)}, {v(DN(qb), 2)} op_sel_hi:[1,0]")
        for qb in Q:
            pair, e = (qb - 1) // 2, (qb - 1) % 2
            for h in range(2):
                A(f"v_cvt_pk_bf16_f32 {v(OP(pair) + 2 * e + h)}, {v(OO(qb) + 2 * h)}, {v(OO(qb) + 2 * h + 1)}")
        for pair in range(2):
            for h in range(2):
                A(f"v_permlane16_swap_b32 {v(OP(pair) + h)}, {v(OP(pair) + 2 + h)}")
        self.dual([f"buffer_store_dwordx4 {v(OP(0), 4)}, {v(VO)}, {s(sWS, 4)}, {s(sT1)} offen",
                   f"buffer_store_dwordx4 {v(OP(1), 4)}, {v(VO)}, {s(sWS, 4)}, {s(sT2)} offen"])

    def flag_store(self, base_lines):
        A = self.A
        T = vTR + 99
        for ln in base_lines:
            A(ln)
        A(f"v_mov_b32 {v(T)}, {s(sTAG)}")
        A("s_mov_b64 exec, 1")
        self.dual([f"buffer_store_dword {v(T)}, off, {s(sWS, 4)}, {s(sT0)}"])
        A("s_mov_b64 exec, -1")

    def oproj(self):
        A = self.A
        OF = vTR
        ACC = vTR + 64
        WF = [120 + 4 * k for k in range(8)] + [72 + 4 * k for k in range(4)] + [vTR + 80 + 4 * k for k in range(4)]
        T = vTR + 96
        A("s_waitcnt vmcnt(0)")
        self.flag_store([f"s_lshl_b32 {s(sT3)}, {s(sLAYER)}, 12",
                         f"s_lshl_b32 {s(sT4)}, {s(sCID)}, 7",
                         f"s_add_u32 {s(sT3)}, {s(sT3)}, {s(sT4)}",
                         f"s_add_u32 {s(sT3)}, {s(sT3)}, {OFLG_BASE}",
                         f"s_lshl_b32 {s(sT0)}, {s(sT0)}, 2",
                         f"s_add_u32 {s(sT0)}, {s(sT0)}, {s(sT3)}"])
        A("s_barrier")

        def trs(ks):
            L = []
            for cb in range(4):
                r = WF[(ks & 3) * 4 + cb]
                L.append(f"ds_read_b64_tr_b16 {v(r, 2)}, {v(vTRO + cb)} offset:{ks * 4096}")
                L.append(f"ds_read_b64_tr_b16 {v(r + 2, 2)}, {v(vTRO + cb)} offset:{ks * 4096 + 512}")
            return L
        for ks in range(4):
            for ln in trs(ks):
                A(ln)
        loop = A.newlabel('LO')
        A(f"v_and_b32 {v(T)}, 31, {v(vL)}")
        A(f"v_lshlrev_b32 {v(T)}, 2, {v(T)}")
        A(f"s_lshl_b32 {s(sT1)}, {s(sWAVE)}, 14")
        A(f"s_add_u32 {s(sT1)}, {s(sT1)}, {s(sOB)}")
        self.spin_start()
        A.label(loop)
        A(f"buffer_load_dword {v(T + 1)}, {v(T)}, {s(sWS, 4)}, {s(sT3)} offen sc1")
        A("s_waitcnt vmcnt(0)")
        A(f"v_cmp_ne_u32 vcc, {s(sTAG)}, {v(T + 1)}")
        self.spin_check(loop, 2)
        self.stamp()
        for ks in range(16):
            if ks and ks % 4 == 0:
                A(f"s_add_u32 {s(sT1)}, {s(sT1)}, 4096")
            A(f"buffer_load_dwordx4 {v(OF + 4 * ks, 4)}, {v(vL16)}, {s(sWS, 4)}, {s(sT1)} offen offset:{(ks & 3) * 1024} sc1")
        for ks in range(16):
            A(f"s_waitcnt vmcnt({15 - ks}) lgkmcnt({0 if ks in (0, 14, 15) else 15 if ks < 13 else 8})")
            nxt = trs(ks + 4) if ks + 4 < 16 else []
            for cb in range(4):
                c = v(vRES + 4 * cb, 4) if ks == 0 else v(ACC + 4 * cb, 4)
                A(f"v_mfma_f32_16x16x32_bf16 {v(ACC + 4 * cb, 4)}, {v(WF[(ks & 3) * 4 + cb], 4)}, {v(OF + 4 * ks, 4)}, {c}")
                if nxt and cb >= 1:
                    A(nxt[2 * (cb - 1)])
                    A(nxt[2 * (cb - 1) + 1])
            if nxt:
                A("s_nop 0")
                A(nxt[6])
                A(nxt[7])
        self.stamp()
        D1, D2 = vTR, vTR + 4
        for k in range(8):
            A(f"v_cvt_pk_bf16_f32 {v(vX1P + k)}, {v(ACC + 2 * k)}, {v(ACC + 2 * k + 1)}")
        A(f"v_mfma_f32_16x16x32_bf16 {v(D2, 4)}, {v(vX1P, 4)}, {v(vX1P, 4)}, 0")
        A(f"v_mfma_f32_16x16x32_bf16 {v(D1, 4)}, {v(vWRF, 4)}, {v(vX1P, 4)}, 0")
        A(f"v_mfma_f32_16x16x32_bf16 {v(D2, 4)}, {v(vX1P + 4, 4)}, {v(vX1P + 4, 4)}, {v(D2, 4)}")
        A(f"v_mfma_f32_16x16x32_bf16 {v(D1, 4)}, {v(vWRF + 4, 4)}, {v(vX1P + 4, 4)}, {v(D1, 4)}")
        N = vTR + 8
        for k in range(8):
            A(f"v_mov_b32 {v(N + k)}, {v(vX1P + k)}")
        A(f"""
        s_mul_i32 {s(sT3)}, {s(sLAYER)}, {STAT_LAYER}
        s_lshl_b32 {s(sT4)}, {s(sREC)}, 11
        s_add_u32 {s(sT3)}, {s(sT3)}, {s(sT4)}
        s_add_u32 {s(sT3)}, {s(sT3)}, {STAT_BASE}
        s_lshl_b32 {s(sT4)}, {s(sM)}, 8
        s_add_u32 {s(sT4)}, {s(sT4)}, {s(sT3)}
        v_lshlrev_b32 {v(T)}, 4, {v(vT)}
        """)
        self.diag(D1 + 2, D2)
        A(f"v_mov_b32 {v(D1 + 3)}, {s(sTAG)}")
        A(f"s_mov_b64 exec, {s(sDIAG, 2)}")
        self.dual([f"buffer_store_dwordx4 {v(D1, 4)}, {v(T)}, {s(sWS, 4)}, {s(sT4)} offen"])
        A("s_mov_b64 exec, -1")
        skip = A.newlabel('LQ')
        A(f"s_cmp_lg_u32 {s(sLAYER)}, 0")
        A(f"s_cbranch_scc1 {skip}")
        self.nat_swaps(N)
        A(f"s_lshl_b32 {s(sT4)}, {s(sM)}, 7")
        A(f"s_add_u32 {s(sT4)}, {s(sT4)}, {s(sXOWN)}")
        A(f"s_add_u32 {s(sT4)}, {s(sT4)}, {X1_BASE}")
        self.dual([f"buffer_store_dwordx4 {v(N, 4)}, {v(vNAT)}, {s(sWS, 4)}, {s(sT4)} offen",
                   f"buffer_store_dwordx4 {v(N + 4, 4)}, {v(vNAT)}, {s(sWS, 4)}, {s(sT4)} offen offset:64"])
        A.label(skip)

    def nat_swaps(self, N):
        A = self.A
        for i in range(2):
            for h in range(2):
                A(f"v_permlane16_swap_b32 {v(N + 4 * i + h)}, {v(N + 4 * i + 2 + h)}")

    def stat_poll(self, G, soff, first=None):
        A = self.A
        loop = A.newlabel('LT')
        self.spin_start()
        ld = [f"buffer_load_dwordx4 {v(G, 4)}, {v(vL16)}, {s(sWS, 4)}, {s(soff)} offen sc1",
              f"buffer_load_dwordx4 {v(G + 4, 4)}, {v(vL16)}, {s(sWS, 4)}, {s(soff)} offen offset:1024 sc1",
              "s_waitcnt vmcnt(0)"]
        if first:
            chk = A.newlabel('LT')
            for ln in ld:
                A(ln)
            first()
            A(f"s_branch {chk}")
        A.label(loop)
        for ln in ld:
            A(ln)
        if first:
            A.label(chk)
        A(f"v_cmp_ne_u32 vcc, {s(sTAG)}, {v(G + 3)}")
        A(f"v_cmp_ne_u32 {s(sEX, 2)}, {s(sTAG)}, {v(G + 7)}")
        A(f"s_or_b64 vcc, vcc, {s(sEX, 2)}")
        self.spin_check(loop, 3)
        A(f"v_pk_add_f32 {v(G, 2)}, {v(G, 2)}, {v(G + 4, 2)}")
        A(f"v_add_f32 {v(G + 2)}, {v(G + 2)}, {v(G + 6)}")
        self.allreduce_rows([G, G + 1, G + 2], [G + 4, G + 5, G + 6], 'v_add_f32', dpp=False)

    def ln_stats(self, G, mean, rs1, s2, tmp):
        A = self.A
        A(f"""
        v_mul_f32 {v(mean)}, {s(sC0)}, {v(G)}
        v_mul_f32 {v(G + 2)}, {s(sC0)}, {v(G + 2)}
        v_fma_f32 {v(G + 2)}, -{v(mean)}, {v(mean)}, {v(G + 2)}
        v_max_f32 {v(G + 2)}, 0, {v(G + 2)}
        v_add_f32 {v(rs1)}, {s(sC1)}, {v(G + 2)}
        v_rsq_f32 {v(rs1)}, {v(rs1)}
        """)

    def ln_s2(self, G, rs1, s2, tmp):
        A = self.A
        A(f"""
        v_add_f32 {v(tmp)}, 1.0, {v(rs1)}
        v_mul_f32 {v(s2)}, {v(tmp)}, {v(tmp)}
        v_fma_f32 {v(s2)}, {v(s2)}, {v(G + 2)}, {s(sC1)}
        v_rsq_f32 {v(s2)}, {v(s2)}
        v_mul_f32 {v(s2)}, {v(s2)}, {v(tmp)}
        """)

    def unpack(self, dst, src, n):
        for k in range(n):
            self.A(f"v_lshlrev_b32 {v(dst + 2 * k)}, 16, {v(src + k)}")
            self.A(f"v_and_b32 {v(dst + 2 * k + 1)}, 0xffff0000, {v(src + k)}")

    def router(self):
        A = self.A
        G = vTR + 16
        MEAN, RS1 = vTR + 24, vTR + 25
        S2, TMP = vTR + 26, vTR + 27
        PR = vTR + 28
        K1, K2 = vTR + 32, vTR + 33
        H = vTR + 40
        T = vTR + 56

        def xflag():
            skip = A.newlabel('LF')
            A(f"s_cmp_lg_u32 {s(sLAYER)}, 0")
            A(f"s_cbranch_scc1 {skip}")
            self.flag_store([f"s_lshl_b32 {s(sT0)}, {s(sM)}, 2",
                             f"s_add_u32 {s(sT0)}, {s(sT0)}, {s(sWAVE)}",
                             f"s_lshl_b32 {s(sT0)}, {s(sT0)}, 2",
                             f"s_lshl_b32 {s(sT1)}, {s(sCID)}, 7",
                             f"s_add_u32 {s(sT0)}, {s(sT0)}, {s(sT1)}",
                             f"s_add_u32 {s(sT0)}, {s(sT0)}, {XFLG_BASE}"])
            A.label(skip)
        self.unpack(vRES, vX1P, 8)
        self.stat_poll(G, sT3, first=xflag)
        self.stamp()
        self.ln_stats(G, MEAN, RS1, S2, TMP)
        A(f"""
        v_fma_f32 {v(G + 1)}, -{v(MEAN)}, {v(vSW)}, {v(G + 1)}
        s_lshl_b32 {s(sT0)}, {s(sREC)}, 5
        v_lshl_or_b32 {v(T)}, {v(vT)}, 1, {s(sT0)}
        v_mul_f32 {v(G + 1)}, {v(G + 1)}, {v(RS1)}
        s_mov_b32 {s(sT1)}, 0xfffff000
        v_ashrrev_i32 {v(T + 1)}, 31, {v(G + 1)}
        v_or_b32 {v(T + 1)}, 0x80000000, {v(T + 1)}
        v_xor_b32 {v(T + 1)}, {v(T + 1)}, {v(G + 1)}
        v_and_or_b32 {v(vKEY)}, {v(T + 1)}, {s(sT1)}, {v(T)}
        v_mov_b32 {v(PR)}, {v(RS1)}
        v_mul_f32 {v(PR + 1)}, -{v(MEAN)}, {v(RS1)}
        v_mov_b32 {v(K1)}, {v(vKEY)}
        """)
        hl = [f"v_pk_fma_f32 {v(H + 2 * k, 2)}, {v(vRES + 2 * k, 2)}, {v(PR, 2)}, {v(PR, 2)} op_sel:[0,0,1] op_sel_hi:[1,0,1]" for k in range(8)]
        hl += [f"v_cvt_pk_bf16_f32 {v(vHP + k)}, {v(H + 2 * k)}, {v(H + 2 * k + 1)}" for k in range(8)]
        for rot in (8, 4, 2, 1):
            A(f"v_max_u32_dpp {v(K1)}, {v(K1)}, {v(K1)} row_ror:{rot} row_mask:0xf bank_mask:0xf")
            A(hl.pop(0))
            A(hl.pop(0))
        A(f"v_cmp_eq_u32 vcc, {v(K1)}, {v(vKEY)}")
        A(f"v_mov_b32 {v(K1 + 2)}, {s(sTAG)}")
        A(f"v_mov_b32 {v(K1 + 3)}, 0")
        A(f"v_cndmask_b32 {v(K2)}, {v(vKEY)}, {v(K1 + 3)}, vcc")
        for rot in (8, 4, 2, 1):
            A(hl.pop(0))
            A(hl.pop(0))
            A(f"v_max_u32_dpp {v(K2)}, {v(K2)}, {v(K2)} row_ror:{rot} row_mask:0xf bank_mask:0xf")
        A(f"v_cmp_eq_u32 {s(sEX, 2)}, {v(K2)}, {v(vKEY)}")
        A(f"v_or_b32 {v(K2)}, 1, {v(K2)}")
        skip = A.newlabel('LR')
        A(f"""
        s_add_u32 {s(sT0)}, {s(sWAVE)}, 4
        s_cmp_lg_u32 {s(sT0)}, {s(sM)}
        s_cbranch_scc1 {skip}
        v_lshlrev_b32 {v(T)}, 11, {v(vL)}
        s_mul_i32 {s(sT0)}, {s(sLAYER)}, {REC_LAYER}
        s_lshl_b32 {s(sT1)}, {s(sREC)}, 4
        s_add_u32 {s(sT0)}, {s(sT0)}, {s(sT1)}
        s_add_u32 {s(sT0)}, {s(sT0)}, {REC_BASE}
        s_mov_b64 exec, 0xff
        buffer_store_dwordx4 {v(K1, 4)}, {v(T)}, {s(sWS, 4)}, {s(sT0)} offen sc1
        s_mov_b64 exec, -1
        """)
        A.label(skip)
        A(f"""
        v_lshlrev_b32 {v(T + 2)}, 4, {v(vG)}
        v_add_u32 {v(T + 3)}, 1024, {v(T + 2)}
        v_cndmask_b32 {v(T + 2)}, {v(T + 2)}, {v(T + 3)}, {s(sEX, 2)}
        s_lshl_b32 {s(sT0)}, {s(sLAYER)}, 18
        s_lshl_b32 {s(sT1)}, {s(sREC)}, 11
        s_add_u32 {s(sT0)}, {s(sT0)}, {s(sT1)}
        s_lshl_b32 {s(sT1)}, {s(sM)}, 7
        s_add_u32 {s(sT0)}, {s(sT0)}, {s(sT1)}
        s_add_u32 {s(sT0)}, {s(sT0)}, {CAND_BASE}
        s_or_b64 exec, vcc, {s(sEX, 2)}
        buffer_store_dwordx4 {v(vHP, 4)}, {v(T + 2)}, {s(sWS, 4)}, {s(sT0)} offen sc1
        buffer_store_dwordx4 {v(vHP + 4, 4)}, {v(T + 2)}, {s(sWS, 4)}, {s(sT0)} offen offset:64 sc1
        s_mov_b64 exec, -1
        """)
        self.stamp()
        self.unpack(H, vHP, 8)
        for k in range(8):
            A(f"v_pk_add_f32 {v(H + 2 * k, 2)}, {v(H + 2 * k, 2)}, {v(vRES + 2 * k, 2)}")
        N = vTR + 8
        for k in range(8):
            A(f"v_cvt_pk_bf16_f32 {v(N + k)}, {v(H + 2 * k)}, {v(H + 2 * k + 1)}")
        l1, l2 = A.newlabel('LU'), A.newlabel('LU')
        A(f"s_cmp_lg_u32 {s(sLAYER)}, 0")
        A(f"s_cbranch_scc1 {l1}")
        self.unpack(vRES, N, 8)
        self.ln_s2(G, RS1, S2, TMP)
        A(f"s_lshr_b32 {s(sT0)}, {s(sLX)}, 5")
        A(f"v_add_u32 {v(T)}, {s(sT0)}, {v(vSQK)}")
        A(f"ds_write2_b32 {v(T)}, {v(MEAN)}, {v(S2)} offset0:0 offset1:80")
        A(f"s_branch {l2}")
        A.label(l1)
        self.nat_swaps(N)
        A(f"s_lshl_b32 {s(sT4)}, {s(sM)}, 7")
        A(f"s_add_u32 {s(sT4)}, {s(sT4)}, {s(sXOWN)}")
        A(f"buffer_store_dwordx4 {v(N, 4)}, {v(vNAT)}, {s(sOUT, 4)}, {s(sT4)} offen sc1")
        A(f"buffer_store_dwordx4 {v(N + 4, 4)}, {v(vNAT)}, {s(sOUT, 4)}, {s(sT4)} offen offset:64 sc1")
        A.label(l2)

    RAW = vTR

    def ffn_wload(self):
        A = self.A
        T = vTR + 96
        A(f"""
        v_mul_u32_u24 {v(T)}, 3584, {v(vT)}
        v_lshl_add_u32 {v(T)}, {v(vG)}, 4, {v(T)}
        v_lshlrev_b32 {v(T + 1)}, 10, {v(vT)}
        v_lshl_add_u32 {v(T + 1)}, {v(vG)}, 4, {v(T + 1)}
        s_mul_i32 {s(sT0)}, {s(sWAVE)}, {128 * 3584}
        s_lshl_b32 {s(sT1)}, {s(sGIDX)}, 6
        s_add_u32 {s(sT0)}, {s(sT0)}, {s(sT1)}
        """)
        for j in range(8):
            if j:
                A(f"s_add_u32 {s(sT0)}, {s(sT0)}, {16 * 3584}")
            A(f"buffer_load_dwordx4 {v(self.RAW + 4 * j, 4)}, {v(T)}, {s(sWG, 4)}, {s(sT0)} offen")
            A(f"buffer_load_dwordx4 {v(self.RAW + 32 + 4 * j, 4)}, {v(T)}, {s(sWU, 4)}, {s(sT0)} offen")
        A(f"""
        s_lshl_b32 {s(sT0)}, {s(sGIDX)}, 15
        s_lshl_b32 {s(sT1)}, {s(sWAVE)}, 8
        s_add_u32 {s(sT0)}, {s(sT0)}, {s(sT1)}
        s_add_u32 {s(sT1)}, {s(sT0)}, 16384
        """)
        for c in range(4):
            for h in range(2):
                A(f"buffer_load_dwordx4 {v(self.RAW + 64 + 8 * c + 4 * h, 4)}, {v(T + 1)}, {s(sWD, 4)}, {s(sT1 if h else sT0)} offen offset:{64 * c}")

    def ffn_wtrans(self):
        A = self.A
        SEL = 120
        D = 128
        C = 144
        T = 148
        A(f"v_lshlrev_b32 {v(T)}, 3, {v(vG)}")
        A(f"v_sub_u32 {v(T)}, {v(vT)}, {v(T)}")
        A(f"v_mov_b32 {v(T + 2)}, 0x3f80")
        A(f"v_mov_b32 {v(T + 3)}, 0x3f800000")
        for e in range(2):
            for r in range(4):
                A(f"v_cmp_eq_u32 vcc, {2 * r - 16 * e}, {v(T)}")
                A(f"v_cmp_eq_u32 {s(sEX, 2)}, {2 * r + 1 - 16 * e}, {v(T)}")
                A(f"v_cndmask_b32 {v(SEL + 4 * e + r)}, 0, {v(T + 2)}, vcc")
                A(f"v_cndmask_b32 {v(SEL + 4 * e + r)}, {v(SEL + 4 * e + r)}, {v(T + 3)}, {s(sEX, 2)}")
        jobs = []
        for mat in range(2):
            for j in range(8):
                for e in range(2):
                    jobs.append((self.RAW + 32 * mat + 4 * j, e, 'a', 192 + ((mat * 2 + e) * 4 + j // 2) * 4 + 2 * (j & 1)))
        for c in range(4):
            for h in range(2):
                for e in range(2):
                    jobs.append((self.RAW + 64 + 8 * c + 4 * h, e, 'v', vWD + (2 * c + e) * 4 + 2 * h))
        LAG = 3
        for n in range(len(jobs) + LAG):
            if n < len(jobs):
                raw, e, _, _ = jobs[n]
                A(f"v_mfma_f32_16x16x32_bf16 {v(D + 4 * (n & 3), 4)}, {v(raw, 4)}, {v(SEL + 4 * e, 4)}, 0")
            if n >= LAG:
                k = n - LAG
                _, _, kind, dst = jobs[k]
                d = D + 4 * (k & 3)
                if kind == 'v':
                    A(f"v_cvt_pk_bf16_f32 {v(dst)}, {v(d)}, {v(d + 1)}")
                    A(f"v_cvt_pk_bf16_f32 {v(dst + 1)}, {v(d + 2)}, {v(d + 3)}")
                else:
                    c_ = C + 2 * (k & 1)
                    A(f"v_cvt_pk_bf16_f32 {v(c_)}, {v(d)}, {v(d + 1)}")
                    A(f"v_cvt_pk_bf16_f32 {v(c_ + 1)}, {v(d + 2)}, {v(d + 3)}")
                    A(f"v_accvgpr_write_b32 {a(dst)}, {v(c_)}")
                    A(f"v_accvgpr_write_b32 {a(dst + 1)}, {v(c_ + 1)}")

    def ximage(self):
        A = self.A
        T = 144
        loop = A.newlabel('LI')
        A(f"""
        v_and_b32 {v(T)}, 31, {v(vL)}
        v_lshlrev_b32 {v(T)}, 2, {v(T)}
        v_add_u32 {v(T)}, 128, {v(T)}
        v_and_b32 {v(T + 1)}, 7, {v(vL)}
        v_lshl_or_b32 {v(T + 1)}, {v(T + 1)}, 4, 12
        s_cmp_eq_u32 {s(sB)}, 0
        s_cselect_b32 {s(sT0)}, 64, 32
        v_cmp_le_u32 vcc, {s(sT0)}, {v(vL)}
        s_lshl_b32 {s(sT0)}, {s(sCID)}, 7
        s_add_u32 {s(sT0)}, {s(sT0)}, {XFLG_BASE - 128}
        v_cndmask_b32 {v(T)}, {v(T)}, {v(T + 1)}, vcc
        """)
        self.spin_start()
        A.label(loop)
        A(f"buffer_load_dword {v(T + 1)}, {v(T)}, {s(sWS, 4)}, {s(sT0)} offen sc1")
        A("s_waitcnt vmcnt(0)")
        A(f"v_cmp_ne_u32 vcc, {s(sTAG)}, {v(T + 1)}")
        self.spin_check(loop, 4)
        A(f"s_lshl_b32 {s(sKX)}, {s(sROT)}, 7")
        A(f"s_add_u32 {s(sXOWN)}, {s(sXOWN)}, {X1_BASE}")
        for P in range(8):
            for tag, L in self.dma_x(P, sWS, ' sc1'):
                for x in L:
                    A(x)
        A(f"s_sub_u32 {s(sXOWN)}, {s(sXOWN)}, {X1_BASE}")
        for tag, L in self.dma_halo(sWS, X1_BASE, ' sc1'):
            for x in L:
                A(x)
        skip = A.newlabel('LH')
        G = 120
        A(f"""
        s_cmp_lg_u32 {s(sWAVE)}, 0
        s_cbranch_scc1 {skip}
        s_cmp_eq_u32 {s(sB)}, 0
        s_cbranch_scc1 {skip}
        s_lshl_b32 {s(sT3)}, {s(sCID)}, 13
        s_add_u32 {s(sT3)}, {s(sT3)}, {STAT_BASE - 2048}
        """)
        self.stat_poll(G, sT3)
        self.ln_stats(G, G + 8, G + 9, G + 10, G + 11)
        self.ln_s2(G, G + 9, G + 10, G + 11)
        A(f"ds_write2_b32 {v(vSQK)}, {v(G + 8)}, {v(G + 10)} offset0:0 offset1:80")
        A.label(skip)

    def top2(self):
        A = self.A
        G = vTR + 64
        loop = A.newlabel('LK')
        A(f"""
        s_mul_i32 {s(sT0)}, {s(sLAYER)}, {REC_LAYER}
        s_lshl_b32 {s(sT1)}, {s(sXX)}, 11
        s_add_u32 {s(sT0)}, {s(sT0)}, {s(sT1)}
        s_add_u32 {s(sT0)}, {s(sT0)}, {REC_BASE}
        """)
        self.spin_start()
        A.label(loop)
        A(f"""
        buffer_load_dwordx4 {v(G, 4)}, {v(vL16)}, {s(sWS, 4)}, {s(sT0)} offen sc1
        buffer_load_dwordx4 {v(G + 4, 4)}, {v(vL16)}, {s(sWS, 4)}, {s(sT0)} offen offset:1024 sc1
        s_waitcnt vmcnt(0)
        v_cmp_ne_u32 vcc, {s(sTAG)}, {v(G + 2)}
        v_cmp_ne_u32 {s(sEX, 2)}, {s(sTAG)}, {v(G + 6)}
        s_or_b64 vcc, vcc, {s(sEX, 2)}
        """)
        self.spin_check(loop, 5)
        M, N_, T = G + 8, G + 9, G + 10
        A(f"v_max_u32 {v(M)}, {v(G)}, {v(G + 4)}")
        A(f"v_min_u32 {v(N_)}, {v(G)}, {v(G + 4)}")
        A(f"v_mov_b32 {v(T + 1)}, {v(M)}")
        A(f"v_max3_u32 {v(N_)}, {v(N_)}, {v(G + 1)}, {v(G + 5)}")
        self.allreduce_rows([M], [T], 'v_max_u32')
        A(f"v_cmp_eq_u32 vcc, {v(M)}, {v(T + 1)}")
        A(f"v_readfirstlane_b32 {s(sK1)}, {v(M)}")
        A(f"v_cndmask_b32 {v(N_)}, {v(T + 1)}, {v(N_)}, vcc")
        self.allreduce_rows([N_], [T], 'v_max_u32')
        A(f"v_readfirstlane_b32 {s(sK2)}, {v(N_)}")

    def cand_off(self, dst, key):
        A = self.A
        A(f"s_bfe_u32 {s(dst)}, {s(key)}, {5 | (7 << 16)}")
        A(f"s_lshl_b32 {s(dst)}, {s(dst)}, 1")
        A(f"s_and_b32 {s(sT7)}, {s(key)}, 1")
        A(f"s_add_u32 {s(dst)}, {s(dst)}, {s(sT7)}")
        A(f"s_lshl_b32 {s(dst)}, {s(dst)}, 10")

    def bf16r(self, r):
        self.A(f"v_cvt_pk_bf16_f32 {v(r)}, {v(r)}, {v(r)}")
        self.A(f"v_and_b32 {v(r)}, 0xffff0000, {v(r)}")

    def ffn(self):
        A = self.A
        HF = vTR
        D = vTR + 16
        T = vTR + 32
        O = vTR + 48
        self.cand_off(sT0, sK1)
        self.cand_off(sT1, sK2)
        A(f"""
        v_and_b32 {v(T)}, 1, {v(vL)}
        v_cmp_eq_u32 vcc, 1, {v(T)}
        v_mov_b32 {v(T)}, {s(sT0)}
        v_mov_b32 {v(T + 1)}, {s(sT1)}
        v_cndmask_b32 {v(T)}, {v(T)}, {v(T + 1)}, vcc
        v_lshl_add_u32 {v(T)}, {v(vG)}, 4, {v(T)}
        s_lshl_b32 {s(sT0)}, {s(sLAYER)}, 18
        s_lshl_b32 {s(sT1)}, {s(sWAVE)}, 8
        s_add_u32 {s(sT0)}, {s(sT0)}, {s(sT1)}
        s_add_u32 {s(sT0)}, {s(sT0)}, {CAND_BASE}
        """)
        loop = A.newlabel('LC')
        self.spin_start()
        A.label(loop)
        for jj in range(4):
            A(f"buffer_load_dwordx4 {v(HF + 4 * jj, 4)}, {v(T)}, {s(sWS, 4)}, {s(sT0)} offen offset:{64 * jj} sc1")
        A("s_waitcnt vmcnt(0)")
        A(f"v_max3_u32 {v(T + 1)}, {v(HF)}, {v(HF + 1)}, {v(HF + 2)}")
        for k in range(3, 15, 2):
            A(f"v_max3_u32 {v(T + 1)}, {v(T + 1)}, {v(HF + k)}, {v(HF + k + 1)}")
        A(f"v_max_u32 {v(T + 1)}, {v(T + 1)}, {v(HF + 15)}")
        A(f"v_cmp_eq_u32 vcc, -1, {v(T + 1)}")
        self.spin_check(loop, 6)
        self.stamp()
        for jj in range(4):
            for me in range(4):
                c = '0' if jj == 0 else v(D + 4 * me, 4)
                A(f"v_mfma_f32_16x16x32_bf16 {v(D + 4 * me, 4)}, {a(192 + (me * 4 + jj) * 4, 4)}, {v(HF + 4 * jj, 4)}, {c}")
        A(f"""
        v_lshlrev_b32 {v(T)}, 7, {v(vT)}
        v_lshl_add_u32 {v(T)}, {v(vG)}, 4, {v(T)}
        s_lshl_b32 {s(sT1)}, {s(sWAVE)}, 9
        s_add_u32 {s(sT1)}, {s(sT1)}, {L_FP}
        v_add_u32 {v(T)}, {s(sT1)}, {v(T)}
        v_lshlrev_b32 {v(T + 1)}, 2, {v(vL)}
        v_add_u32 {v(T + 1)}, {L_FP}, {v(T + 1)}
        s_mov_b64 exec, {s(sLT2, 2)}
        """)
        for me in range(4):
            A(f"ds_write_b128 {v(T)}, {v(D + 4 * me, 4)} offset:{(me >> 1) * 256 + (me & 1) * 64}")
        A("s_mov_b64 exec, -1")
        A(f"""
        v_lshrrev_b32 {v(T + 2)}, 5, {v(vL)}
        v_lshlrev_b32 {v(T + 2)}, 6, {v(T + 2)}
        v_bfe_u32 {v(T + 3)}, {v(vL)}, 2, 2
        v_lshl_add_u32 {v(T + 2)}, {v(T + 3)}, 4, {v(T + 2)}
        v_bfe_u32 {v(T + 3)}, {v(vL)}, 4, 1
        v_lshl_add_u32 {v(T + 2)}, {v(T + 3)}, 3, {v(T + 2)}
        v_and_b32 {v(T + 3)}, 3, {v(vL)}
        v_lshl_add_u32 {v(T + 2)}, {v(T + 3)}, 1, {v(T + 2)}
        s_lshl_b32 {s(sT1)}, {s(sWAVE)}, 8
        s_add_u32 {s(sT1)}, {s(sT1)}, {L_PRIV}
        v_add_u32 {v(T + 2)}, {s(sT1)}, {v(T + 2)}
        v_and_b32 {v(T + 3)}, 1, {v(vL)}
        v_lshlrev_b32 {v(T + 3)}, 6, {v(T + 3)}
        v_lshl_add_u32 {v(T + 3)}, {v(vG)}, 4, {v(T + 3)}
        v_add_u32 {v(T + 3)}, {s(sT1)}, {v(T + 3)}
        s_waitcnt lgkmcnt(0)
        s_barrier
        """)
        for w_ in range(4):
            A(f"ds_read2st64_b32 {v(D + 2 * w_, 2)}, {v(T + 1)} offset0:{2 * w_} offset1:{2 * w_ + 1}")
        A(f"s_mov_b32 {s(sT2)}, {hex(f2u(-1.4426950408889634))}")
        A("s_waitcnt lgkmcnt(0)")
        A(f"v_pk_add_f32 {v(D, 2)}, {v(D, 2)}, {v(D + 2, 2)}")
        A(f"v_pk_add_f32 {v(D + 4, 2)}, {v(D + 4, 2)}, {v(D + 6, 2)}")
        A(f"v_pk_add_f32 {v(D, 2)}, {v(D, 2)}, {v(D + 4, 2)}")
        A(f"v_cvt_pk_bf16_f32 {v(D + 2)}, {v(D)}, {v(D + 1)}")
        A(f"v_lshlrev_b32 {v(D)}, 16, {v(D + 2)}")
        A(f"v_and_b32 {v(D + 1)}, 0xffff0000, {v(D + 2)}")
        A(f"v_mul_f32 {v(D + 2)}, {s(sT2)}, {v(D)}")
        A(f"v_exp_f32 {v(D + 2)}, {v(D + 2)}")
        A(f"v_add_f32 {v(D + 2)}, 1.0, {v(D + 2)}")
        A(f"v_rcp_f32 {v(D + 2)}, {v(D + 2)}")
        A(f"v_mul_f32 {v(D)}, {v(D)}, {v(D + 2)}")
        self.bf16r(D)
        A(f"v_mul_f32 {v(D)}, {v(D)}, {v(D + 1)}")
        A(f"v_cvt_pk_bf16_f32 {v(D)}, {v(D)}, {v(D)}")
        A(f"ds_write_b16 {v(T + 2)}, {v(D)}")
        A(f"""
        v_mul_u32_u24 {v(T)}, {8 * N256}, {v(vT)}
        v_lshl_add_u32 {v(T)}, {v(vG)}, 4, {v(T)}
        s_mul_i32 {s(sT0)}, {s(sLAYER)}, {PART_LAYER}
        s_mul_i32 {s(sT1)}, {s(sWAVE)}, {2 * N256}
        s_add_u32 {s(sT0)}, {s(sT0)}, {s(sT1)}
        s_lshl_b32 {s(sT1)}, {s(sGIDX)}, 8
        s_add_u32 {s(sT0)}, {s(sT0)}, {s(sT1)}
        s_add_u32 {s(sT0)}, {s(sT0)}, {PART_BASE}
        s_add_u32 {s(sT1)}, {s(sT0)}, {N256}
        s_waitcnt lgkmcnt(0)
        ds_read_b128 {v(HF, 4)}, {v(T + 3)}
        s_waitcnt lgkmcnt(0)
        """)
        for j in range(8):
            A(f"v_mfma_f32_16x16x32_bf16 {v(O + 4 * j, 4)}, {v(vWD + 4 * j, 4)}, {v(HF, 4)}, 0")
        A(f"s_mov_b64 exec, {s(sLT2, 2)}")
        for j in range(8):
            A(f"buffer_store_dwordx4 {v(O + 4 * j, 4)}, {v(T)}, {s(sWS, 4)}, {s(sT1 if j >= 4 else sT0)} offen offset:{(j & 3) * 64} sc1")
        A("s_mov_b64 exec, -1")

    def qkv_block(self):
        A = self.A
        B = vTR
        SQ, SV = vTR + 4, vTR + 8
        XF = vTR + 16
        AQ, AK, AV = vTR + 40, vTR + 44, vTR + 48
        T = vTR + 52
        A(f"s_lshl_b32 {s(sT0)}, {s(sT5)}, 11")
        for j in range(4):
            A(f"v_add_u32 {v(B + j)}, {s(sT0)}, {v(vXR + j)}")
        A(f"s_lshl_b32 {s(sT0)}, {s(sT5)}, 6")
        rd = lambda i: f"ds_read_b128 {v(XF + 4 * (i % 6), 4)}, {v(B + (2 if i >= 8 else 0) + (i & 1))} offset:{XIMG + ((i >> 1) & 3) * 10240}"
        for i in range(5):
            A(rd(i))
        A(f"v_add_u32 {v(T)}, {s(sT0)}, {v(vSQK)}")
        A(f"v_add_u32 {v(T + 1)}, {s(sT0)}, {v(vSV)}")
        for i in range(16):
            n_out = min(15 - i, 4) + (3 if i >= 11 else 0)
            A(f"s_waitcnt lgkmcnt({n_out})")
            x = v(XF + 4 * (i % 6), 4)
            c = (lambda r: '0') if i == 0 else (lambda r: v(r, 4))
            A(f"v_mfma_f32_16x16x32_bf16 {v(AK, 4)}, {a((16 + i) * 4, 4)}, {x}, {c(AK)}")
            if i + 5 < 16:
                A(rd(i + 5))
            if i == 10:
                A(f"ds_read2_b32 {v(SQ, 2)}, {v(T)} offset0:0 offset1:80")
                A(f"ds_read_b128 {v(SV, 4)}, {v(T + 1)}")
                A(f"ds_read_b128 {v(SV + 4, 4)}, {v(T + 1)} offset:320")
            A(f"v_mfma_f32_16x16x32_bf16 {v(AV, 4)}, {x}, {a((32 + i) * 4, 4)}, {c(AV)}")
            A(f"v_mfma_f32_16x16x32_bf16 {v(AQ, 4)}, {a(i * 4, 4)}, {x}, {c(AQ)}")
        A("s_waitcnt lgkmcnt(0)")
        ep = self.epi_lines(1, AQ, AK, AV, SQ, SV)
        common = [x for x in ep if x.startswith('v_pk')]
        for x in common:
            A(x)
        done = A.newlabel('LB')
        for tb in range(5):
            nxt = A.newlabel('LB')
            if tb < 4:
                A(f"s_cmp_lg_u32 {s(sT5)}, {tb}")
                A(f"s_cbranch_scc1 {nxt}")
            for x in self.epi_lines(tb, AQ, AK, AV, SQ, SV):
                if not x.startswith('v_pk'):
                    A(x)
            if tb < 4:
                A(f"s_branch {done}")
                A.label(nxt)
        A.label(done)

    def owner(self):
        A = self.A
        GA = vTR
        Y = vTR + 56
        T = vTR + 72
        N = vTR + 80
        H = vTR + 88
        top, nxt = A.newlabel('LW'), A.newlabel('LW')
        A(f"s_mov_b32 {s(sSLOT)}, 0")
        A(f"s_mov_b32 {s(sKK)}, {s(sK1)}")
        A.label(top)
        A(f"""
        s_bfe_u32 {s(sT0)}, {s(sKK)}, {5 | (7 << 16)}
        s_cmp_lg_u32 {s(sT0)}, {s(sREC)}
        s_cbranch_scc1 {nxt}
        s_mul_i32 {s(sT0)}, {s(sLAYER)}, {PART_LAYER}
        s_lshl_b32 {s(sT1)}, {s(sSLOT)}, 3
        s_add_u32 {s(sT1)}, {s(sT1)}, {s(sM)}
        s_mul_i32 {s(sT1)}, {s(sT1)}, {N256}
        s_add_u32 {s(sT0)}, {s(sT0)}, {s(sT1)}
        s_add_u32 {s(sT2)}, {s(sT0)}, {PART_BASE}
        """)
        A(f"""
        s_and_b32 {s(sT0)}, {s(sKK)}, 0xfffff000
        s_ashr_i32 {s(sT1)}, {s(sT0)}, 31
        s_not_b32 {s(sT1)}, {s(sT1)}
        s_or_b32 {s(sT1)}, {s(sT1)}, 0x80000000
        s_xor_b32 {s(sT0)}, {s(sT0)}, {s(sT1)}
        v_mov_b32 {v(T)}, {s(sT0)}
        """)
        self.bf16r(T)
        A(f"v_mul_f32 {v(T)}, {hex(f2u(-1.4426950408889634))}, {v(T)}")
        A(f"v_exp_f32 {v(T)}, {v(T)}")
        A(f"v_add_f32 {v(T)}, 1.0, {v(T)}")
        A(f"v_rcp_f32 {v(T)}, {v(T)}")
        self.bf16r(T)
        A(f"""
        s_lshl_b32 {s(sT1)}, {s(sWAVE)}, 8
        s_add_u32 {s(sT1)}, {s(sT1)}, {L_PRIV}
        v_lshlrev_b32 {v(T + 2)}, 4, {v(vT)}
        v_add_u32 {v(T + 2)}, {s(sT1)}, {v(T + 2)}
        v_lshlrev_b32 {v(T + 3)}, 4, {v(vG)}
        v_add_u32 {v(T + 3)}, {s(sT1)}, {v(T + 3)}
        """)
        loop = A.newlabel('LG')
        self.spin_start()
        A.label(loop)
        A(f"s_mov_b32 {s(sT0)}, {s(sT2)}")
        for j in range(14):
            if j and j % 4 == 0:
                A(f"s_add_u32 {s(sT0)}, {s(sT0)}, 4096")
            A(f"buffer_load_dwordx4 {v(GA + 4 * j, 4)}, {v(vL16)}, {s(sWS, 4)}, {s(sT0)} offen offset:{(j & 3) * 1024} sc1")
        for j in range(1, 14):
            A(f"s_waitcnt vmcnt({13 - j})")
            A(f"v_pk_add_f32 {v(GA, 2)}, {v(GA, 2)}, {v(GA + 4 * j, 2)}")
            A(f"v_pk_add_f32 {v(GA + 2, 2)}, {v(GA + 2, 2)}, {v(GA + 4 * j + 2, 2)}")
        A(f"v_add_f32 {v(GA + 4)}, {v(GA)}, {v(GA + 1)}")
        A(f"v_add_f32 {v(GA + 5)}, {v(GA + 2)}, {v(GA + 3)}")
        A(f"v_cmp_u_f32 vcc, {v(GA + 4)}, {v(GA + 5)}")
        self.spin_check(loop, 7)
        self.stamp()
        self.allreduce_rows([GA, GA + 1, GA + 2, GA + 3], [GA + 4, GA + 5, GA + 6, GA + 7], 'v_add_f32', dpp=False)
        A(f"v_cvt_pk_bf16_f32 {v(GA + 4)}, {v(GA)}, {v(GA + 1)}")
        A(f"v_cvt_pk_bf16_f32 {v(GA + 5)}, {v(GA + 2)}, {v(GA + 3)}")
        self.unpack(GA, GA + 4, 2)
        A(f"v_pk_mul_f32 {v(GA, 2)}, {v(GA, 2)}, {v(T, 2)} op_sel_hi:[1,0]")
        A(f"v_pk_mul_f32 {v(GA + 2, 2)}, {v(GA + 2, 2)}, {v(T, 2)} op_sel_hi:[1,0]")
        A(f"v_cvt_pk_bf16_f32 {v(GA + 4)}, {v(GA)}, {v(GA + 1)}")
        A(f"v_cvt_pk_bf16_f32 {v(GA + 5)}, {v(GA + 2)}, {v(GA + 3)}")
        self.unpack(GA, GA + 4, 2)
        A(f"ds_write_b128 {v(T + 2)}, {v(GA, 4)}")
        HH, XX = vTR + 8, vTR + 24
        self.unpack(HH, vHP, 8)
        A("s_waitcnt lgkmcnt(0)")
        for cb in range(4):
            A(f"ds_read_b128 {v(Y + 4 * cb, 4)}, {v(T + 3)} offset:{cb * 64}")
        self.unpack(XX, vX1P, 8)
        A(f"s_bfe_u32 {s(sT0)}, {s(sKK)}, {1 | (4 << 16)}")
        A(f"v_cmp_eq_u32 {s(sEX, 2)}, {s(sT0)}, {v(vT)}")
        A("s_waitcnt lgkmcnt(0)")
        for k in range(8):
            A(f"v_pk_add_f32 {v(HH + 2 * k, 2)}, {v(HH + 2 * k, 2)}, {v(Y + 2 * k, 2)}")
        for k in range(8):
            A(f"v_cvt_pk_bf16_f32 {v(N + k)}, {v(HH + 2 * k)}, {v(HH + 2 * k + 1)}")
        self.unpack(HH, N, 8)
        for k in range(8):
            A(f"v_pk_add_f32 {v(HH + 2 * k, 2)}, {v(HH + 2 * k, 2)}, {v(XX + 2 * k, 2)}")
        for k in range(8):
            A(f"v_cvt_pk_bf16_f32 {v(N + k)}, {v(HH + 2 * k)}, {v(HH + 2 * k + 1)}")
        l1 = A.newlabel('LW')
        l2 = A.newlabel('LW')
        A(f"s_cmp_lg_u32 {s(sLAYER)}, 0")
        A(f"s_cbranch_scc1 {l1}")
        A(f"s_mov_b64 exec, {s(sEX, 2)}")
        self.unpack(vRES, N, 8)
        A("s_mov_b64 exec, -1")
        self.nat_swaps(N)
        A(f"""
        v_and_b32 {v(T)}, 0x7ff, {v(vNAT)}
        s_lshl_b32 {s(sT0)}, {s(sSLOT)}, 11
        s_lshl_b32 {s(sT1)}, {s(sM)}, 7
        s_add_u32 {s(sT0)}, {s(sT0)}, {s(sT1)}
        s_add_u32 {s(sT0)}, {s(sT0)}, {FIX_BASE}
        s_mov_b64 exec, {s(sEX, 2)}
        """)
        self.dual([f"buffer_store_dwordx4 {v(N, 4)}, {v(T)}, {s(sWS, 4)}, {s(sT0)} offen",
                   f"buffer_store_dwordx4 {v(N + 4, 4)}, {v(T)}, {s(sWS, 4)}, {s(sT0)} offen offset:64"])
        A(f"buffer_store_dwordx4 {v(N, 4)}, {v(T)}, {s(sWS, 4)}, {s(sT0)} offen offset:1024 sc1")
        A(f"buffer_store_dwordx4 {v(N + 4, 4)}, {v(T)}, {s(sWS, 4)}, {s(sT0)} offen offset:1088 sc1")
        A("s_mov_b64 exec, -1")
        A(f"s_branch {nxt}")
        A.label(l1)
        self.nat_swaps(N)
        A(f"""
        s_lshl_b32 {s(sT4)}, {s(sM)}, 7
        s_add_u32 {s(sT4)}, {s(sT4)}, {s(sXOWN)}
        s_mov_b64 exec, {s(sEX, 2)}
        buffer_store_dwordx4 {v(N, 4)}, {v(vNAT)}, {s(sOUT, 4)}, {s(sT4)} offen sc1
        buffer_store_dwordx4 {v(N + 4, 4)}, {v(vNAT)}, {s(sOUT, 4)}, {s(sT4)} offen offset:64 sc1
        s_mov_b64 exec, -1
        """)
        A.label(nxt)
        A(f"""
        s_mov_b32 {s(sKK)}, {s(sK2)}
        s_add_u32 {s(sSLOT)}, {s(sSLOT)}, 1
        s_cmp_lt_u32 {s(sSLOT)}, 2
        s_cbranch_scc1 {top}
        """)

    def aff_block(self, key, dst):
        A = self.A
        A(f"""
        s_bfe_u32 {s(sT0)}, {s(key)}, {7 | (5 << 16)}
        s_bfe_u32 {s(sT1)}, {s(key)}, {5 | (2 << 16)}
        s_add_u32 {s(dst)}, {s(sT1)}, 1
        s_cmp_eq_u32 {s(sT0)}, {s(sCID)}
        s_cselect_b32 {s(dst)}, {s(dst)}, -1
        s_bfe_u32 {s(sT1)}, {s(key)}, {1 | (6 << 16)}
        s_add_u32 {s(sT0)}, {s(sT0)}, 1
        s_cmp_ge_u32 {s(sT1)}, 57
        s_cselect_b32 {s(sT0)}, {s(sT0)}, -1
        s_cmp_eq_u32 {s(sB)}, 0
        s_cselect_b32 {s(sT0)}, -1, {s(sT0)}
        s_cmp_eq_u32 {s(sT0)}, {s(sCID)}
        s_cselect_b32 {s(dst)}, 0, {s(dst)}
        """)

    def fixup(self):
        A = self.A
        R = vTR
        T = vTR + 8
        self.aff_block(sK1, sT5)
        self.aff_block(sK2, sT6)
        A(f"""
        s_mov_b32 {s(sMASK)}, 0
        s_lshl_b32 {s(sT0)}, 1, {s(sT5)}
        s_cmp_lt_i32 {s(sT5)}, 0
        s_cselect_b32 {s(sMASK)}, 0, {s(sT0)}
        s_lshl_b32 {s(sT0)}, 1, {s(sT6)}
        s_cmp_lt_i32 {s(sT6)}, 0
        s_cselect_b32 {s(sT0)}, 0, {s(sT0)}
        s_or_b32 {s(sMASK)}, {s(sMASK)}, {s(sT0)}
        s_cbranch_scc0 L_NEXT
        """)
        skip = A.newlabel('LZ')
        A(f"""
        s_cmp_eq_u32 {s(sWAVE)}, 0
        s_cselect_b32 {s(sT5)}, {s(sT5)}, {s(sT6)}
        s_cselect_b32 {s(sKK)}, {s(sK1)}, {s(sK2)}
        s_cmp_ge_u32 {s(sWAVE)}, 2
        s_cbranch_scc1 {skip}
        s_cmp_lt_i32 {s(sT5)}, 0
        s_cbranch_scc1 {skip}
        s_lshl_b32 {s(sT0)}, {s(sWAVE)}, 11
        s_add_u32 {s(sT0)}, {s(sT0)}, {FIX_BASE}
        s_add_u32 {s(sT1)}, {s(sT0)}, 1024
        s_cmp_eq_u32 {s(sT5)}, 0
        s_cselect_b32 {s(sT0)}, {s(sT1)}, {s(sT0)}
        s_bfe_u32 {s(sT1)}, {s(sKK)}, {1 | (4 << 16)}
        v_lshrrev_b32 {v(T)}, 3, {v(vL)}
        v_subrev_u32 {v(T)}, {s(sROT)}, {v(T)}
        v_and_b32 {v(T)}, 7, {v(T)}
        v_mul_u32_u24 {v(T)}, 10240, {v(T)}
        s_and_b32 {s(sT2)}, {s(sT1)}, 6
        v_and_b32 {v(T + 1)}, 7, {v(vL)}
        v_xor_b32 {v(T + 1)}, {s(sT2)}, {v(T + 1)}
        v_lshl_add_u32 {v(T)}, {v(T + 1)}, 4, {v(T)}
        s_lshl_b32 {s(sT2)}, {s(sT5)}, 4
        s_add_u32 {s(sT2)}, {s(sT2)}, {s(sT1)}
        s_lshl_b32 {s(sT3)}, {s(sT2)}, 7
        v_add_u32 {v(T)}, {s(sT3)}, {v(T)}
        s_lshl_b32 {s(sT2)}, {s(sT2)}, 2
        s_add_u32 {s(sT2)}, {s(sT2)}, {L_MEAN}
        v_mov_b32 {v(T + 1)}, {s(sT2)}
        """)
        loop = A.newlabel('LY')
        self.spin_start()
        A.label(loop)
        A(f"""
        buffer_load_dwordx4 {v(R, 4)}, {v(vL16)}, {s(sWS, 4)}, {s(sT0)} offen sc1
        v_mov_b32 {v(R + 4)}, 0
        v_mov_b32 {v(R + 6)}, 0
        s_waitcnt vmcnt(0)
        v_max3_u32 {v(R + 5)}, {v(R)}, {v(R + 1)}, {v(R + 2)}
        v_max_u32 {v(R + 5)}, {v(R + 5)}, {v(R + 3)}
        v_cmp_eq_u32 vcc, -1, {v(R + 5)}
        """)
        self.spin_check(loop, 8)
        self.stamp()
        A(f"ds_write_b128 {v(T)}, {v(R, 4)} offset:{XIMG}")
        for r in range(4):
            A(f"v_dot2c_f32_bf16 {v(R + 4)}, {v(R + r)}, {v(vONE)}")
            A(f"v_dot2c_f32_bf16 {v(R + 6)}, {v(R + r)}, {v(R + r)}")
        self.allreduce_rows([R + 4, R + 6], [T + 2, T + 3], 'v_add_f32')
        self.ln_stats(R + 4, T + 4, T + 5, None, None)
        A(f"ds_write2_b32 {v(T + 1)}, {v(T + 4)}, {v(T + 5)} offset0:0 offset1:80")
        A.label(skip)
        A("s_waitcnt lgkmcnt(0)")
        A("s_barrier")

    def finish_stamps(self):
        if not self.o.stamps:
            return
        A = self.A
        A("s_waitcnt vmcnt(0)")
        self.stamp()
        if self.o.dbg:
            sel = [('v254', 1), ('v254', 2), ('v254', 4), ('v254', 6), ('v254', 8), ('v254', 13), ('v254', 17), ('v254', 18),
                   ('v255', 4), ('v255', 6), ('v255', 8), ('v255', 13), ('v255', 17), ('v255', 19)]
            A(f"s_load_dwordx2 s[8:9], s[0:1], 72")
            A(f"s_memrealtime {s(sST, 2)}")
            A("s_mov_b32 s10, 256")
            A("v_readlane_b32 s56, v254, 0")
            A("v_mov_b32 v200, 0")
            for n, (r, ln) in enumerate(sel):
                A(f"v_readlane_b32 s57, {r}, {ln}")
                A("s_sub_u32 s58, s57, s56")
                A("s_cmp_eq_u32 s57, 0")
                A("s_cselect_b32 s58, 0, s58")
                A(f"v_writelane_b32 v200, s58, {n}")
            A("s_waitcnt lgkmcnt(0)")
            A(f"v_writelane_b32 v200, {s(sST)}, 15")
            A("s_not_b32 s3, s3")
            A(f"v_writelane_b32 v200, s3, 14")
            A(f"v_lshlrev_b32 v253, 2, {v(vL)}")
            A("s_mov_b64 exec, 0xffff")
            A("buffer_atomic_umax v200, v253, s[8:11], 0 offen")
            A("s_mov_b64 exec, -1")
            return
        A(f"""
        s_lshl_b32 {s(sT0)}, s2, 2
        s_add_u32 {s(sT0)}, {s(sT0)}, {s(sWAVE)}
        s_lshl_b32 {s(sT0)}, {s(sT0)}, 8
        s_add_u32 {s(sT0)}, {s(sT0)}, {STAMP_BASE}
        v_lshlrev_b32 v253, 2, {v(vL)}
        s_mov_b32 exec_hi, 0
        buffer_store_dword v254, v253, {s(sWS, 4)}, {s(sT0)} offen
        buffer_store_dword {v(vSTAMP)}, v253, {s(sWS, 4)}, {s(sT0)} offen offset:128
        s_mov_b64 exec, -1
        """)

    def build(self):
        A = self.A
        self.prologue()
        self.qkv1()
        self.stamp()
        self.side_finish()
        A.label('L_ATT')
        self.attention()
        self.stamp()
        self.oproj()
        self.router()
        self.stamp()
        lg1, lg2, ll1, ln1, lq = [A.newlabel('LM') for _ in range(5)]
        A(f"s_cmp_lg_u32 {s(sLAYER)}, 0")
        A(f"s_cbranch_scc1 {ll1}")
        A(f"s_cmp_lt_i32 {s(sGIDX)}, 0")
        A(f"s_cbranch_scc1 {lg1}")
        self.ffn_wload()
        A.label(lg1)
        self.ximage()
        A(f"s_cmp_lt_i32 {s(sGIDX)}, 0")
        A(f"s_cbranch_scc1 {lg2}")
        self.ffn_wtrans()
        A.label(ll1)
        A(f"s_cmp_lt_i32 {s(sGIDX)}, 0")
        A(f"s_cbranch_scc1 {lg2}")
        self.stamp()
        self.top2()
        self.stamp()
        self.ffn()
        self.stamp()
        A.label(lg2)
        A(f"s_cmp_lg_u32 {s(sLAYER)}, 0")
        A(f"s_cbranch_scc1 {ln1}")
        A("s_waitcnt vmcnt(0) lgkmcnt(0)")
        A("s_barrier")
        self.stamp()
        A(f"s_mov_b32 {s(sMASK)}, 31")
        A(f"s_mov_b32 {s(sPASS)}, 0")
        A.label('L_QKV')
        A(f"s_ff1_i32_b32 {s(sT5)}, {s(sMASK)}")
        A(f"s_bitset0_b32 {s(sMASK)}, {s(sT5)}")
        self.qkv_block()
        A(f"s_cmp_lg_u32 {s(sMASK)}, 0")
        A("s_cbranch_scc1 L_QKV")
        self.stamp()
        A(f"s_cmp_lg_u32 {s(sPASS)}, 0")
        A("s_cbranch_scc1 L_NEXT")
        A.label(ln1)
        A(f"s_cmp_ge_i32 {s(sGIDX)}, 0")
        A(f"s_cbranch_scc1 {lq}")
        self.top2()
        A.label(lq)
        self.stamp()
        self.owner()
        A(f"s_cmp_lg_u32 {s(sLAYER)}, 0")
        A("s_cbranch_scc1 L_DONE")
        self.fixup()
        A(f"s_mov_b32 {s(sPASS)}, 1")
        A("s_branch L_QKV")
        A.label('L_NEXT')
        A(f"s_mov_b32 {s(sLAYER)}, 1")
        if self.o.stamps:
            A(f"v_mov_b32 v254, {v(vSTAMP)}")
            A(f"v_mov_b32 {v(vSTAMP)}, 0")
        A("s_branch L_ATT")
        A.label('L_DONE')
        A(f"""
        s_or_b32 {s(sT0)}, s2, {s(sWAVE)}
        s_cmp_lg_u32 {s(sT0)}, 0
        s_cbranch_scc1 L_FIN
        s_add_u32 {s(sT0)}, {s(sE0)}, 1
        v_mov_b32 {v(vTR)}, {s(sT0)}
        s_mov_b64 exec, 1
        buffer_store_dword {v(vTR)}, off, {s(sWS, 4)}, 0 offset:{EPOCH_OFF} sc1
        s_mov_b64 exec, -1
        """)
        A.label('L_FIN')
        self.finish_stamps()
        A.label('L_END')
        A("s_endpgm")
        if 'd' in self.o.exp:
            A.lines = [x for x in A.lines if not x.endswith(' lds')]
        if 'M' in self.o.exp:
            A.lines = [x for x in A.lines if not x.startswith('v_mfma_f32_16x16x32')]
        if 'b' in self.o.exp:
            A.lines = [x for x in A.lines if not x.startswith('s_barrier')]
        body = A.finish(verbose=self.o.verbose)
        ref = open('cdna_kernels/' + NAME + '.s.ref').read().split('\n')
        hdr = [ln for ln in ref if ln.startswith(';') and '@launch' not in ln]
        out = '\n'.join(hdr) + '\n'
        out += f"; @launch grid=(256,1,1) block=(256,1,1) lds={LDS_BYTES}\n"
        out += f""".amdgcn_target "amdgcn-amd-amdhsa--gfx950"
.text
.globl {NAME}_kernel
.p2align 8
.type {NAME}_kernel,@function
{NAME}_kernel:
{body}.section .rodata,"a"
.p2align 6
.amdhsa_kernel {NAME}_kernel
  .amdhsa_next_free_vgpr 512
  .amdhsa_next_free_sgpr 102
  .amdhsa_accum_offset 256
  .amdhsa_group_segment_fixed_size 0
  .amdhsa_kernarg_size 88
  .amdhsa_user_sgpr_count 2
  .amdhsa_user_sgpr_kernarg_segment_ptr 1
  .amdhsa_system_sgpr_workgroup_id_x 1
.end_amdhsa_kernel
"""
        return out


if __name__ == '__main__':
    ap = argparse.ArgumentParser()
    ap.add_argument('-o', default='k.s')
    ap.add_argument('--stop', default='')
    ap.add_argument('--stamps', type=int, default=0)
    ap.add_argument('--slow', type=int, default=0)
    ap.add_argument('--rota', type=int, default=1)
    ap.add_argument('--rotb', type=int, default=0)
    ap.add_argument('--verbose', type=int, default=0)
    ap.add_argument('--exp', default='')
    ap.add_argument('--na', type=int, default=6)
    ap.add_argument('--dbg', type=int, default=0)
    ap.add_argument('--gap', type=int, default=56)
    ap.add_argument('--burst', type=int, default=7)
    ap.add_argument('--npro', type=int, default=18)
    opt = ap.parse_args()
    open(opt.o, 'w').write(Gen(opt).build())
```
